```python
import torch

def _softmax(x, axis=-1):
    return torch.softmax(x, dim=axis)
def _gelu(x):
    return torch.nn.functional.gelu(x, approximate="tanh")
def _silu(x):
    return torch.nn.functional.silu(x)
def _sigmoid(x):
    return torch.sigmoid(x)
def _layernorm(x, axis=-1, eps=1e-5):
    m = x.mean(dim=axis, keepdim=True)
    v = x.var(dim=axis, keepdim=True, unbiased=False)
    return (x - m) / torch.sqrt(v + eps)
def _scatter_add(tgt, idx, src, axis=0):
    return tgt.clone().index_add_(axis, idx, src)
def _segment_sum(src, seg, n):
    out = torch.zeros((n,) + src.shape[1:], dtype=src.dtype)
    return out.index_add_(0, seg, src)
def _pad(x, pw):
    flat = tuple(v for pair in reversed(pw) for v in pair)
    return torch.nn.functional.pad(x, flat)

kernel_name = 'standalone__winograd__vision'

def setup_inputs():

    _w = (lambda a: (lambda t: t.to(torch.bfloat16) if t.is_floating_point() else t)(torch.as_tensor(a)))
    H = W = 512 // 2 * 2
    C = 192
    return {
        "x": _w((lambda *s: torch.randn(*s, dtype=torch.bfloat16) * 0.05)(1, H, W, C)),
        "w": _w((lambda *s: torch.randn(*s, dtype=torch.bfloat16) * 0.05)(3, 3, C, C)),
    }

def reference(x, w):
    N, H, W, C = x.shape
    K = w.shape[-1]
    G  = torch.as_tensor([[1.0,0.0,0.0],[0.5,0.5,0.5],[0.5,-0.5,0.5],[0.0,0.0,1.0]], dtype=x.dtype)
    Bt = torch.as_tensor([[1.0,0.0,-1.0,0.0],[0.0,1.0,1.0,0.0],[0.0,-1.0,1.0,0.0],[0.0,1.0,0.0,-1.0]], dtype=x.dtype)
    At = torch.as_tensor([[1.0,1.0,1.0,0.0],[0.0,1.0,-1.0,-1.0]], dtype=x.dtype)
    U = torch.einsum("ar,rsck,bs->abck", G, w, G)
    xp = _pad(x, ((0,0),(1,1),(1,1),(0,0)))
    nH, nW = H // 2, W // 2
    patches = []
    for i in range(4):
        for j in range(4):
            patches.append(xp[:, i:i + 2 * nH:2, j:j + 2 * nW:2, :])
    d = torch.stack(patches).reshape(4, 4, N * nH * nW, C)
    V = torch.einsum("ai,ijpc,bj->abpc", Bt, d, Bt)
    M = torch.einsum("abck,abpc->abpk", U, V)
    Y = torch.einsum("ma,abpk,nb->pmnk", At, M, At)
    Y = Y.reshape(N, nH, nW, 2, 2, K)
    Y = (lambda x, *d: x.permute(*d))(Y, 0, 1, 3, 2, 4, 5).reshape(N, H, W, K)
    return Y
```

```python
import re
RX = re.compile(r'^([va])(?:(\d+)|\[(\d+):(\d+)\])$')
def regs(tok):
    tok = tok.strip().lstrip('-')
    m = RX.match(tok)
    if not m: return []
    if m.group(2) is not None: return [(m.group(1), int(m.group(2)))]
    return [(m.group(1), i) for i in range(int(m.group(3)), int(m.group(4)) + 1)]
def parse(line):
    line = line.strip()
    if not line or line.endswith(':') or line.startswith('.') or line.startswith(';'): return None
    p = line.split(None, 1); mn = p[0]
    ops = [x.strip().split()[0] if x.strip() else '' for x in (p[1].split(',') if len(p) > 1 else [])]
    R = [regs(o) for o in ops]
    flat = lambda l: [r for x in l for r in x]
    if mn.startswith('v_mfma'): return mn, 'mfma', R[0], flat(R[1:3]), R[3]
    if mn.startswith('v_cmp') or mn.startswith('v_readfirstlane') or mn.startswith('v_readlane'): return mn, 'valu', [], flat(R[1:]), []
    if mn.startswith('v_'):
        src = flat(R[1:])
        if mn.startswith('v_fmac') or mn.startswith('v_writelane'): src += R[0]
        return mn, 'valu', R[0], src, []
    if mn.startswith('ds_read'): return mn, 'dsr', R[0], R[1], []
    if mn.startswith('ds_write'): return mn, 'dsw', [], flat(R), []
    if mn.startswith('buffer_load') or mn.startswith('global_load'): return mn, 'vml', R[0], flat(R[1:]), []
    if mn.startswith('buffer_atomic') or mn.startswith('global_atomic'): return mn, 'vms', [], flat(R), []
    if mn.startswith('buffer_store') or mn.startswith('global_store'): return mn, 'vms', [], flat(R), []
    return mn, 'salu', [], [], []
def check(lines):
    vm = []; lg = []
    pos = 0; mfw = {}; vaw = {}; stw = {}
    errs = []
    for ln, line in enumerate(lines):
        P = parse(line)
        if P is None: continue
        mn, k, dst, src, srcc = P
        if mn == 's_waitcnt':
            m = re.search(r'vmcnt\((\d+)\)', line)
            if m: n = int(m.group(1)); vm = vm[len(vm) - n:] if n and n < len(vm) else (vm if n else [])
            m = re.search(r'lgkmcnt\((\d+)\)', line)
            if m: n = int(m.group(1)); lg = lg[len(lg) - n:] if n and n < len(lg) else (lg if n else [])
        def err(s): errs.append(f'{ln}: {s}: {line.strip()}')
        pend_vm = set(r for d in vm for r in d); pend_lg = set(r for d in lg for r in d)
        for r in src + srcc:
            if r in pend_vm or r in pend_lg: err(f'read of pending {r}')
        for r in dst:
            if r in pend_vm and k != 'vml': err(f'write of vm-pending {r}')
            if r in pend_lg and k != 'dsr': err(f'write of lg-pending {r}')
        if k == 'mfma':
            for r in src:
                if r in mfw and pos - mfw[r] - 1 < 8: err(f'mfma D->A/B {r}')
            for r in src + srcc:
                if r in vaw and pos - vaw[r] - 1 < 2: err(f'valu->mfma {r}')
        elif k != 'salu':
            for r in src + dst:
                if r in mfw and pos - mfw[r] - 1 < 8: err(f'mfma D->{k} {r} dist {pos-mfw[r]-1}')
        if k in ('valu', 'dsr', 'vml', 'mfma'):
            for r in dst:
                if r in stw and pos - stw[r] - 1 < (2 if k == 'valu' else 1): err(f'store data WAR {r}')
        if k == 'mfma':
            for r in dst: mfw[r] = pos
        if k == 'valu':
            for r in dst: vaw[r] = pos
        if k == 'vms':
            for r in src: stw[r] = pos
            vm.append(set())
        if k == 'vml': vm.append(set(dst))
        if k == 'dsr': lg.append(set(dst))
        if k == 'dsw': lg.append(set())
        if mn == 's_nop': pos += int(line.split()[1]) + 1
        else: pos += 1
    return errs

class Lds:
    def __init__(s):
        s.lab = {}; s.R = []; s.W = []; s.errs = []
    def barrier(s): s.R = []; s.W = []
    def access(s, kind, ranges, label, where, strict=True):
        cells = set()
        for a, b in ranges: cells.update(range(a // 16, (b + 15) // 16))
        if kind == 'r':
            for c, l, w in s.W:
                if c & cells: s.errs.append(f'RAW same epoch: {where} vs {w}')
            if strict:
                bad = [c for c in cells if s.lab.get(c) != label]
                if bad: s.errs.append(f'label mismatch {where}: want {label} got {set(s.lab.get(c) for c in bad)}')
            s.R.append((cells, label, where))
        else:
            for c, l, w in s.R:
                if c & cells: s.errs.append(f'WAR same epoch: {where} vs {w}')
            for c, l, w in s.W:
                if c & cells and l != label: s.errs.append(f'WAW same epoch: {where} vs {w}')
            for c in cells: s.lab[c] = label
            s.W.append((cells, label, where))
```

```python
import sys, struct, argparse, os
sys.path.insert(0, os.path.dirname(os.path.abspath(__file__)))
import verify
from fractions import Fraction as Fr

ap = argparse.ArgumentParser()
ap.add_argument('out', nargs='?', default='standalone__winograd__vision.s')
ap.add_argument('--stamp', action='store_true')
ap.add_argument('--pro', action='store_true')
ap.add_argument('--help_at', type=int, default=9)
ap.add_argument('--early', type=int, default=9)
ap.add_argument('--haloat', type=int, default=1)
ap.add_argument('--rt', action='store_true')
ap.add_argument('--psleep', type=int, default=0)
ap.add_argument('--xdelay', type=int, default=0)
ap.add_argument('--idle', type=int, default=0)
ap.add_argument('--idle2', type=int, default=0)
ap.add_argument('--fine', type=int, default=-1)
ap.add_argument('--fwg', type=int, default=0)
ap.add_argument('--exp', default='')
ap.add_argument('--upol', default=' sc1')
ap.add_argument('--xpol', default='')
ap.add_argument('--xpol2', default='')
ap.add_argument('--xr2', default='012345')
ap.add_argument('--spol', default=' sc1')
ap.add_argument('--pollat', type=int, default=9)
ap.add_argument('--chkat', type=int, default=4)
ap.add_argument('--x1at', type=int, default=2)
ap.add_argument('--fpol', default='')
ap.add_argument('--pf', default='18f00,20f01,21f02,23f03')
ap.add_argument('--pl0', default='0')
ap.add_argument('--pl1', default='7')
ap.add_argument('--nearly', type=int, default=9)
ap.add_argument('--npark', type=int, default=2)
ap.add_argument('--b35', type=int, default=50)
ap.add_argument('--b0g', type=int, default=31)
ap.add_argument('--nj35', type=int, default=5)
ap.add_argument('--y3end', type=float, default=2.4)
ap.add_argument('--stg', default='69,1,13,16,21')
ap.add_argument('--stp', default='24.1,27.4,31.4,35.6')
ap.add_argument('--upf', default='31,1,7,12,18,25')
ap.add_argument('--ord', default='c2')
ap.add_argument('--ug', default='')
ap.add_argument('--xg', type=int, default=23)
ap.add_argument('--xsp', type=int, default=5)
ap.add_argument('--probe', type=int, default=-1)
args = ap.parse_args()
XR2 = [int(c) for c in args.xr2]
EXP = set(x for x in args.exp.split(',') if x)
STAMP = args.stamp

def f32(x): return '0x%08x' % struct.unpack('<I', struct.pack('<f', float(x)))[0]

P = Fr(9, 16); Q = Fr(2); SIG = P * P + Q * Q; KAP = P * P * Q * Q
XB = 512 * 512 * 192 * 2
WB = 9 * 192 * 192 * 2
UB = 36 * 36864
ROWB = 512 * 384
OOB = 0x7F000000

UNIT = 2080
PLS = 40704
def plane(g): return g * PLS + (g >> 1) * 64
HOFF = 19 * UNIT
DUMMY = plane(3) + HOFF + 1152
assert DUMMY + 256 <= 163840
def rowpos(phi): return (48 - 16 * phi) if phi < 4 else (114 - 16 * (phi - 4))
B0U = {1: 7, 2: 8, 3: 9, 4: 10, 5: 11, 0: 16}
B5U = {2: 12, 3: 13, 4: 14, 5: 15, 0: 17, 1: 18}
Y0U, Y3U = 6, 8
def unit(pos, c):
    if pos == 0: return B0U[c]
    if pos == 5: return B5U[c]
    k = pos - 1
    if c % 2 == 0: return k
    if k < 3: return 4 + k
    return 0 if c == 5 else B5U[5]
def sub(t):
    if t < 24: return 1 + (t & 3), t >> 2
    if t < 30: return 0, t - 24
    return 5, t - 30
SLOT = {0: 0, 1: 1, 4: 2, 3: 3, 2: 4, 5: 5}

S3, S4 = 0, 96
RAW = 192
VRING = 228
TMP = 248
vR, vU, vXW = 253, 254, 255
def acc(pos, j, q):
    o = (j * 3 + q) * 4
    if pos == 1: return f'a[{o}:{o+3}]'
    if pos == 2: return f'a[{96+o}:{96+o+3}]'
    if pos in (3, 0): return f'v[{S3+o}:{S3+o+3}]'
    return f'v[{S4+o}:{S4+o+3}]'
def ufrag(t, s, q):
    i = (t & 1) * 9 + s * 3 + q
    if i < 16: return f'a[{192+4*i}:{192+4*i+3}]'
    return f'v[{240+4*(i-16)}:{240+4*(i-16)+3}]'
def vfrag(F):
    b = VRING + 4 * (F % 3)
    return f'v[{b}:{b+3}]'
sROW = 16
sMASK, sNSIG, sNP2, sIK, sP, sNP, sNSK, sK = 22, 23, 24, 25, 26, 27, 28, 29
sP2, sQT, s2P, sP3h = 30, 31, 34, 35
sW, sGEN, sOUT, sOUT3, sT0, sT1, sT2, sT3 = 38, 39, 40, 41, 42, 43, 44, 45
sEXM = 46
sCB, sTR, sH, sRB, sW96, sWP, sT4 = 48, 49, 50, 51, 52, 53, 54
sPF, sPFD = 100, 101

class Op:
    def __init__(s, text, kind='alu', tag=None, need=(), cls=None):
        s.text, s.kind, s.tag, s.need = text, kind, tag, tuple(need)
        if cls is None:
            m = text.split()[0]
            if m.startswith('v_'): cls = 'v'
            elif m.startswith('s_'): cls = 's'
            elif m.startswith('ds_read'): cls = 'r'
            elif m == 'ds_write_b64': cls = 'w8'
            elif m == 'ds_write_b128': cls = 'w16'
            elif m.startswith('buffer_load_dwordx4'): cls = 'l4'
            elif m.startswith('buffer_load') or m.startswith('global_load'): cls = 'l2'
            elif m.startswith('buffer_store'): cls = 'st'
        s.cls = cls; s.notbefore = None
def A(text, need=()): return Op(text, 'alu', None, need)
def DS(text, tag, need=(), fp=None):
    o = Op(text, 'ds', tag, need); o.fp = fp
    return o
def VM(text, tag, need=()): return Op(text, 'vm', tag, need)
class Grp:
    def __init__(s, ops, cls): s.ops, s.cls, s.notbefore = ops, cls, None
class Wait:
    cls = 's'
    def __init__(s, tags): s.tags = tags; s.notbefore = None
class LgAll:
    cls = 's'; notbefore = None
class BarOnly:
    cls = 'bar'; notbefore = None
class Bar: pass
class Stamp:
    def __init__(s, k): s.k = k

class Emit:
    def __init__(s):
        s.L = []; s.vm = []; s.lg = []; s.late = 0; s.lds = None; s.blk = 0
    def raw(s, x): s.L.append(x)
    def e(s, x): s.L.append('    ' + x)
    def wait(s, tags):
        nv = nl = None
        for tag in tags:
            iv = [i for i, t in enumerate(s.vm) if t == tag]
            if iv:
                n = len(s.vm) - 1 - iv[-1]; nv = n if nv is None else min(nv, n)
            il = [i for i, t in enumerate(s.lg) if t == tag]
            if il:
                n = len(s.lg) - 1 - il[-1]; nl = n if nl is None else min(nl, n)
        parts = []
        if nv is not None:
            nv = min(nv, 63); parts.append(f'vmcnt({nv})'); s.vm = s.vm[len(s.vm) - nv:] if nv else []
        if nl is not None:
            nl = min(nl, 15); parts.append(f'lgkmcnt({nl})'); s.lg = s.lg[len(s.lg) - nl:] if nl else []
        if parts: s.e('s_waitcnt ' + ' '.join(parts))
        return bool(parts)
    def op(s, o):
        if isinstance(o, (list, tuple)):
            for x in o: s.op(x)
        elif isinstance(o, Grp):
            for x in o.ops: s.op(x)
        elif isinstance(o, Wait): s.wait(o.tags)
        elif isinstance(o, LgAll):
            s.e('s_waitcnt lgkmcnt(0)'); s.lg = []
        elif isinstance(o, BarOnly):
            assert not s.lg, s.lg
            s.e('s_barrier')
            if s.lds: s.lds.barrier()
        elif isinstance(o, Bar):
            s.e('s_waitcnt lgkmcnt(0)'); s.lg = []; s.e('s_barrier')
            if s.lds: s.lds.barrier()
        elif isinstance(o, Stamp):
            if STAMP: s.e(f'{"s_memrealtime" if args.rt else "s_memtime"} s[{60+2*o.k}:{61+2*o.k}]')
        else:
            if o.need and s.wait(o.need): s.late += 1
            if 'nost' in EXP and o.cls == 'st': return
            if 'novr' in EXP and o.cls == 'r' and o.tag[0] == 'V' and o.tag[1] > 2: return
            if 'noodd' in EXP and getattr(o, 'odd', False): return
            s.e(o.text)
            if o.kind == 'ds':
                s.lg.append(o.tag)
                if s.lds:
                    for ranges, label, dg in o.fp:
                        s.lds.access('r' if o.cls == 'r' else 'w', ranges, (label, s.blk + dg), f'blk{s.blk}:{len(s.L)}:{o.text}', strict=(s.blk + dg >= 0))
            elif o.kind == 'vm': s.vm.append(o.tag)

def pr(r): return f'v[{r}:{r+1}]'
def transform(R, tag):
    ops = [Wait([tag])]
    t1, t2, t3, t4, x = TMP, TMP + 1, TMP + 2, TMP + 3, TMP + 4
    first = True
    for d in range(2):
        D = [R + 2 * r + d for r in range(6)]
        for i, t in enumerate((t1, t2, t3, t4)):
            ops.append(A(f'v_lshlrev_b32 v{t}, 16, v{D[i+1]}', need=[tag] if first else ())); first = False
        for i in range(1, 5): ops.append(A(f'v_and_b32 v{D[i]}, s{sMASK}, v{D[i]}'))
        for (dd, la, lb, ha, hb, k1, k2) in ((D[0], t4, t2, D[4], D[2], sIK, sNSK), (D[5], t1, t3, D[1], D[3], sK, sNSIG)):
            ops.append(A(f'v_lshlrev_b32 v{x}, 16, v{dd}'))
            ops.append(A(f'v_and_b32 v{dd}, s{sMASK}, v{dd}'))
            ops.append(A(f'v_fmac_f32 v{x}, s{k1}, v{la}'))
            ops.append(A(f'v_fmac_f32 v{dd}, s{k1}, v{ha}'))
            ops.append(A(f'v_fmac_f32 v{x}, s{k2}, v{lb}'))
            ops.append(A(f'v_fmac_f32 v{dd}, s{k2}, v{hb}'))
            ops.append(A(f'v_cvt_pk_bf16_f32 v{dd}, v{x}, v{dd}'))
        for (a1, a2, a3, a4, xx) in ((t1, t2, t3, t4, x), (D[1], D[2], D[3], D[4], t2)):
            ops.append(A(f'v_fma_f32 v{xx}, v{a2}, s{sNP2}, v{a4}'))
            ops.append(A(f'v_fmac_f32 v{a4}, -4.0, v{a2}'))
            ops.append(A(f'v_fma_f32 v{a2}, v{a1}, s{sNP2}, v{a3}'))
            ops.append(A(f'v_fmac_f32 v{a3}, -4.0, v{a1}'))
            ops.append(A(f'v_fma_f32 v{a1}, v{a3}, s{sP}, v{a4}'))
            ops.append(A(f'v_fmac_f32 v{a4}, s{sNP}, v{a3}'))
            ops.append(A(f'v_fma_f32 v{a3}, v{a2}, 2.0, v{xx}'))
            ops.append(A(f'v_fmac_f32 v{xx}, -2.0, v{a2}'))
        ops.append(A(f'v_cvt_pk_bf16_f32 v{D[1]}, v{t1}, v{D[1]}'))
        ops.append(A(f'v_cvt_pk_bf16_f32 v{D[4]}, v{t4}, v{D[4]}'))
        ops.append(A(f'v_cvt_pk_bf16_f32 v{D[3]}, v{t3}, v{D[3]}'))
        ops.append(A(f'v_cvt_pk_bf16_f32 v{D[2]}, v{x}, v{t2}'))
    if 'novalu' in EXP: ops = ops[:1] + [A('s_nop 0') for _ in range(9)]
    return ops

def pkfma(d, a, k, c):
    if isinstance(k, str): sr, m = k, 'op_sel_hi:[1,0,1]'
    elif k % 2 == 0: sr, m = f's[{k}:{k+1}]', 'op_sel_hi:[1,0,1]'
    else: sr, m = f's[{k-1}:{k}]', 'op_sel:[0,1,0]'
    return f'v_pk_fma_f32 {pr(d)}, {pr(a)}, {sr}, {pr(c)} {m}'
def transform_pk(R, tag, T):
    ops = [Wait([tag])]
    def fma(d, a, k, c): ops.append(A(pkfma(d, a, k, c)))
    for d in range(2):
        D = [R + 2 * r + d for r in range(6)]
        p = [T + 2 * r for r in range(6)]; x = T + 12
        for r in range(6):
            ops.append(A(f'v_lshlrev_b32 v{p[r]}, 16, v{D[r]}', need=[tag])); ops.append(A(f'v_and_b32 v{p[r]+1}, s{sMASK}, v{D[r]}'))
        fma(p[0], p[4], sIK, p[0]); fma(p[5], p[1], sK, p[5])
        fma(p[0], p[2], sNSK, p[0]); fma(p[5], p[3], sNSIG, p[5])
        fma(x, p[2], sNP2, p[4]); fma(p[4], p[2], '-4.0', p[4]); fma(p[2], p[1], sNP2, p[3]); fma(p[3], p[1], '-4.0', p[3])
        fma(p[1], p[3], sP, p[4]); fma(p[4], p[3], sNP, p[4]); fma(p[3], p[2], '2.0', x); fma(p[2], p[2], '-2.0', x)
        for r in range(6): ops.append(A(f'v_cvt_pk_bf16_f32 v{D[r]}, v{p[r]}, v{p[r]+1}'))
    return ops

def xloads(R, c, h, tag):
    ops = [A(f'v_and_b32 v{R+11}, 0x7fff, v{vXW}')]
    for r in range(6):
        ops.append(VM(f'buffer_load_dwordx2 v[{R+2*r}:{R+2*r+1}], v{R+11}, s[4:7], s{sROW+r} offen offset:{h*384+c*64}{args.xpol2 if (c & 1 and r in XR2) else args.xpol}', tag))
    return ops

def vwrites(R, c, h, dg=0):
    ad = A(f'v_lshrrev_b32 v{TMP+4}, 15, v{vXW}')
    w = {}
    for pos in range(6):
        r = R + 2 * SLOT[pos]
        w[pos] = DS(f'ds_write_b64 v{TMP+4}, v[{r}:{r+1}] offset:{unit(pos,c)*UNIT+(48-16*h)*16}', 'w',
                    fp=[([(unit(pos,c)*UNIT+rowpos(p)*16, unit(pos,c)*UNIT+rowpos(p)*16+256) for p in (h, h+4)], ('V', pos, c), dg)])
    return ad, w

def halo_loads(R, tag):
    a, b, c_ = R + 11, R + 10, R + 9
    ops = [A(f'v_and_b32 v{a}, 0xf0, v{vU}'),
           A(f'v_lshrrev_b32 v{a}, 1, v{a}'),
           A(f'v_add_u32 v{a}, s{sW96}, v{a}'),
           A(f'v_mov_b32 v{b}, s{sT4}'),
           A(f'v_mov_b32 v{c_}, s{sT4+1}'),
           A(f'v_cndmask_b32 v{b}, v{b}, v{c_}, s[56:57]'),
           A(f'v_add_u32 v{a}, v{a}, v{b}')]
    for r in range(6):
        ops += [A(f's_sub_u32 s{sT3}, s{sROW+r}, s{sH}'),
                VM(f'buffer_load_dwordx2 v[{R+2*r}:{R+2*r+1}], v{a}, s[4:7], s{sT3} offen', tag)]
    return ops

def halo_writes(R, dg=0, direct=False):
    a, b, c_ = TMP + 4, TMP, TMP + 1
    ops = [A(f'v_and_b32 v{b}, 0xf0, v{vU}'),
           A(f'v_lshrrev_b32 v{b}, 1, v{b}'),
           A(f'v_add_u32 v{b}, s{sW96}, v{b}'),
           A(f'v_and_b32 v{a}, 8, v{b}'),
           A(f'v_lshrrev_b32 v{c_}, 6, v{b}'),
           A(f'v_mul_u32_u24 v{c_}, 192, v{c_}')] + ([A(f'v_cmp_eq_u32 s[92:93], 0, v{c_}')] if direct else []) + [
           A(f'v_add_u32 v{a}, v{a}, v{c_}'),
           A(f'v_bfe_u32 v{c_}, v{b}, 4, 2'),
           A(f'v_mul_u32_u24 v{c_}, {PLS}, v{c_}'),
           A(f'v_add_u32 v{a}, v{a}, v{c_}'),
           A(f'v_and_b32 v{c_}, 32, v{b}'),
           A(f'v_lshl_add_u32 v{a}, v{c_}, 1, v{a}'),
           A(f'v_bfe_u32 v{c_}, v{vU}, 8, 1'),
           A(f'v_lshl_add_u32 v{a}, v{c_}, 4, v{a}'),
           A(f'v_mov_b32 v{c_}, {DUMMY-HOFF}'),
           A(f'v_cndmask_b32 v{a}, v{c_}, v{a}, s[58:59]')]
    for pos in range(6):
        r = R + 2 * SLOT[pos]
        ops.append(DS(f'ds_write_b64 v{a}, v[{r}:{r+1}] offset:{HOFF+32*pos}', 'w',
                      fp=[([(HOFF+c*192+32*pos, HOFF+c*192+32*pos+32) for c in range(6)], 'H', dg)]))
    if direct:
        ops.append(A('s_and_b64 exec, s[92:93], s[58:59]'))
        for pos in range(6):
            r = R + 2 * SLOT[pos]; o = unit(pos, 0) * UNIT + 1024
            ops.append(DS(f'ds_write_b64 v{a}, v[{r}:{r+1}] offset:{o}', 'w', fp=[([(o, o + 32)], ('V', pos, 0), dg)]))
        ops.append(A('s_mov_b64 exec, -1'))
    return ops

def halo_copy(c, R, dg=0):
    lit = sum(unit(pos, c) << (5 * pos) for pos in range(6))
    a, b = R + 4, R + 5
    return [DS(f'ds_read_b128 v[{R}:{R+3}], v{vR} offset:{HOFF+c*192}', 'hc', fp=[([(HOFF+c*192, HOFF+c*192+192)], 'H', dg)]),
            A(f's_mov_b32 s{sT3}, {lit}'),
            A(f'v_bfe_u32 v{a}, v{vU}, 5, 3'),
            A(f'v_mul_u32_u24 v{b}, 5, v{a}'),
            A(f'v_bfe_u32 v{b}, s{sT3}, v{b}, 5'),
            A(f'v_mul_u32_u24 v{b}, 65, v{b}'),
            A(f'v_sub_u32 v{b}, v{b}, v{a}'),
            A(f'v_lshl_add_u32 v{a}, v{b}, 5, v{vR}'),
            Wait(['hc']),
            Grp([A(f's_mov_b64 exec, s[{sEXM}:{sEXM+1}]'),
                 DS(f'ds_write_b128 v{a}, v[{R}:{R+3}] offset:1024', 'w', need=['hc'],
                    fp=[([(unit(pos,c)*UNIT+1024, unit(pos,c)*UNIT+1056)], ('V', pos, c), dg) for pos in range(6)]),
                 A('s_mov_b64 exec, -1')], 'w16')]

def prefetch(reg, g, k, kind='n'):
    sr = sPF
    return [A(f'v_and_b32 v{reg}, 0x1f0, v{vU}'), A(f'v_mul_u32_u24 v{reg}, 96, v{reg}'),
            VM(f'buffer_load_dword v{reg}, v{reg}, s[4:7], s{sr} offen offset:{k*384+g*128}', 'pf')]

def stage_addr(a128, a64, t):
    return [A(f'v_bfe_u32 v{t}, v{vU}, 6, 2'),
            A(f'v_mul_u32_u24 v{a128}, {PLS}, v{t}'),
            A(f'v_and_b32 v{t}, 0x80, v{vU}'),
            A(f'v_lshrrev_b32 v{t}, 1, v{t}'),
            A(f'v_add_u32 v{a128}, v{a128}, v{t}'),
            A(f'v_and_b32 v{t}, 0x40, v{vU}'),
            A(f'v_lshrrev_b32 v{t}, 2, v{t}'),
            A(f'v_add_u32 v{a128}, v{a128}, v{t}'),
            A(f'v_bfe_u32 v{t}, v{vU}, 4, 2'),
            A(f'v_mul_u32_u24 v{t}, 3104, v{t}'),
            A(f'v_add_u32 v{a128}, v{a128}, v{t}'),
            A(f'v_add_u32 v{a128}, s{sW96}, v{a128}'),
            A(f'v_lshrrev_b32 v{t}, 8, v{vU}'),
            A(f'v_lshl_add_u32 v{a64}, v{t}, 3, v{a128}'),
            A(f'v_lshl_add_u32 v{a128}, v{t}, 4, v{a128}')]

def stage_write(a128, a64, u0, j, q4, q2, lab):
    fp = [([(u0*UNIT+g8*3104+j*384, u0*UNIT+g8*3104+j*384+384) for g8 in range(4)], lab[0], lab[1])]
    return [DS(f'ds_write_b128 v{a128}, {q4} offset:{u0*UNIT+j*384}', 'w', fp=fp),
            DS(f'ds_write_b64 v{a64}, {q2} offset:{u0*UNIT+j*384+64}', 'w', fp=fp)]

def cvt_stage(S, a128, a64, u0, lab, js=range(8), nb=None, after0=()):
    ops = []
    for j in js:
        b = S + 12 * j
        w = stage_write(a128, a64, u0, j, f'v[{b}:{b+3}]', f'v[{b+8}:{b+9}]', lab)
        o = [A(f'v_cvt_pk_bf16_f32 v{b+8+k}, v{b+8+2*k}, v{b+8+2*k+1}') for k in range(2)] + [w[1]]
        o += [A(f'v_cvt_pk_bf16_f32 v{b+k}, v{b+2*k}, v{b+2*k+1}') for k in range(4)] + [w[0]]
        if nb is not None: o[0].notbefore = nb(j)
        ops += o
        if j == 0: ops += list(after0)
    return ops

def rb_read(areg, u0, buf, g8, k, lab):
    o = u0 * UNIT + g8 * 3104 + k * 1024
    return DS(f'ds_read_b128 {buf}, v{areg} offset:{o}', (lab[0], g8, k), fp=[([(o, o + 1024)], lab[0], lab[1])])
def rb_store(buf, sbase, rowoff, g8, k, lab):
    return [A(f's_add_u32 s{sT2}, s{sbase}, {rowoff+g8*3072+k*1024}'),
            VM(f'buffer_store_dwordx4 {buf}, v{vU}, s[12:15], s{sT2} offen{args.spol}', 'st', need=[(lab[0], g8, k)])]

def uload(t, s, q):
    t %= 36
    return VM(f'buffer_load_dwordx4 {ufrag(t,s,q)}, v{vU}, s[8:11], s{sT0} offen offset:{q*1024}{args.upol}', ('U', t, s))
def usoff(t, s): return A(f's_mov_b32 s{sT0}, {(t%36)*36864+s*3072}')

def vread(F):
    dg = F // 360; F %= 360
    t, f = divmod(F, 10)
    pos, c = sub(t)
    e = 65 if f == 0 else (49 if f == 9 else rowpos(f - 1))
    return DS(f'ds_read_b128 {vfrag(F)}, v{vR} offset:{unit(pos,c)*UNIT+e*16}', ('V', F),
              fp=[([(unit(pos,c)*UNIT+e*16, unit(pos,c)*UNIT+e*16+256)], ('V', pos, c), dg)])

def rows_setup():
    o = [A(f's_mul_i32 s{sT1}, s{sTR}, {4*ROWB}') if 'xsame' not in EXP else A(f's_mov_b32 s{sT1}, {4*ROWB}'),
         A(f's_add_u32 s{sT1}, s{sT1}, s{sWP}'),
         Grp([A(f's_cmp_ge_u32 s{sTR}, 128'), A(f's_cselect_b32 s{sT1}, {OOB}, s{sT1}')], 'r'),
         A(f's_sub_u32 s{sROW}, s{sT1}, {ROWB}'),
         Grp([A(f's_cmp_eq_u32 s{sTR}, 0'), A(f's_cselect_b32 s{sROW}, {OOB}, s{sROW}')], 'r'),
         A(f's_mov_b32 s{sROW+1}, s{sT1}')]
    for r in range(2, 6): o.append(A(f's_add_u32 s{sROW+r}, s{sT1}, {(r-1)*ROWB}'))
    o.append(A(f's_add_u32 s{sPF}, s{sT1}, s{sPFD}'))
    return o

EARLYT = set()
PL0 = [int(c) for c in args.pl0]; PL1 = [int(c) for c in args.pl1]
OA, OB = RAW + 2, RAW + 28
def early_ab(tiles, nb):
    ops = []
    T1, T2, T3 = RAW + 12, RAW + 16, RAW + 20
    for (j, q) in tiles:
        o = (j * 3 + q) * 4
        l = [A(f'v_accvgpr_read_b32 v{T1+r}, a{o+r}') for r in range(4)] + [A(f'v_accvgpr_read_b32 v{T2+r}, a{96+o+r}') for r in range(4)]
        l[4].notbefore = nb(j, q)
        l += [A(f'v_add_f32 v{T3+r}, v{T1+r}, v{T2+r}') for r in range(4)] + [A(f'v_sub_f32 v{T1+r}, v{T1+r}, v{T2+r}') for r in range(4)]
        l += [A(f'v_accvgpr_write_b32 a{o+r}, v{T3+r}') for r in range(4)] + [A(f'v_accvgpr_write_b32 a{96+o+r}, v{T1+r}') for r in range(4)]
        ops += l; EARLYT.add((j, q))
    return ops
def even_plain(j, T1, T2, O, nb=None):
    ops = []
    for q in range(3):
        o = (j * 3 + q) * 4
        l = [A(f'v_accvgpr_read_b32 v{T1+r}, a{o+r}') for r in range(4)]
        if (j, q) not in EARLYT:
            l += [A(f'v_accvgpr_read_b32 v{T2+r}, a{96+o+r}') for r in range(4)] + [A(f'v_add_f32 v{T1+r}, v{T1+r}, v{T2+r}') for r in range(4)]
        m = [A(f'v_add_f32 v{T2+r}, v{S3+o+r}, v{S4+o+r}') for r in range(4)]
        if nb: m[0].notbefore = nb(j, q)
        m += [A(f'v_sub_f32 v{S4+o+r}, v{S3+o+r}, v{S4+o+r}') for r in range(4)]
        m += [A(f'v_fma_f32 v{S3+o+r}, v{T2+r}, s{sQT}, v{T1+r}') for r in range(4)]
        m[-1].mark = ('y0', j, q)
        m += [A(f'v_fmac_f32 v{T2+r}, s{sP2}, v{T1+r}') for r in range(4)]
        m += [A(f'v_cvt_pk_bf16_f32 v{O+2*q+h}, v{T2+2*h}, v{T2+2*h+1}') for h in (0, 1)]
        ops += l + m
    return ops
def burst(E):
    a128, a64 = TMP, TMP + 1
    for i in range(args.idle2): E.e('s_sleep 37')
    js = [j for j in range(8) if j not in PL0 and j not in PL1]
    if js[0] >= 6: E.e('s_nop 7')
    E.raw('.p2align 3')
    neg = 'neg_lo:[0,1] neg_hi:[0,1]'
    pend = []
    for n, j in enumerate(js):
        O1 = (OB, OA)[n & 1]
        for q in range(3):
            o = (j * 3 + q) * 4
            T1, T2 = RAW + 12 + (q & 1) * 8, RAW + 12 + (q & 1) * 8 + 4
            for r in range(4): E.e(f'v_accvgpr_read_b32 v{T1+r}, a{o+r}')
            if (j, q) not in EARLYT:
                for r in range(4): E.e(f'v_accvgpr_read_b32 v{T2+r}, a{96+o+r}')
                for h in (0, 2): E.e(f'v_pk_add_f32 {pr(T1+h)}, {pr(T1+h)}, {pr(T2+h)}')
            for h in (0, 2): E.e(f'v_pk_add_f32 {pr(T2+h)}, {pr(S3+o+h)}, {pr(S4+o+h)}')
            for h in (0, 2): E.e(f'v_pk_add_f32 {pr(S4+o+h)}, {pr(S3+o+h)}, {pr(S4+o+h)} {neg}')
            for h in (0, 2): E.e(pkfma(S3 + o + h, T2 + h, sQT, T1 + h))
            for h in (0, 2): E.e(pkfma(T1 + h, T1 + h, sP2, T2 + h))
            for h in (0, 1): E.e(f'v_cvt_pk_bf16_f32 v{O1+2*q+h}, v{T1+2*h}, v{T1+2*h+1}')
            w = stage_write(a128, a64, 0, j, f'v[{O1}:{O1+3}]', f'v[{O1+4}:{O1+5}]', ('Y2', 0))
            if q == 0 and pend: E.op(pend.pop())
            if q == 1: E.op(w[0])
            if q == 2: pend.append(w[1])
    E.op(pend); E.op(Bar())

def odd_part(a128, a64, npark, g_ok, order):
    ops = []
    T1, T2 = RAW + 28, RAW + 32
    for n, j in enumerate(order):
        O1 = RAW + ((n + 1) & 1) * 6
        for q in range(3):
            o = (j * 3 + q) * 4
            if (j, q) in EARLYT:
                for r in range(4): ops.append(A(f'v_accvgpr_read_b32 v{T1+r}, a{96+o+r}'))
            else:
                for r in range(4): ops.append(A(f'v_accvgpr_read_b32 v{T1+r}, a{o+r}'))
                for r in range(4): ops.append(A(f'v_accvgpr_read_b32 v{T2+r}, a{96+o+r}'))
                for r in range(4): ops.append(A(f'v_sub_f32 v{T1+r}, v{T1+r}, v{T2+r}'))
            for r in range(4): ops.append(A(f'v_fma_f32 v{T2+r}, v{T1+r}, s{s2P}, v{S4+o+r} div:2'))
            for r in range(4): ops.append(A(f'v_fma_f32 v{S4+o+r}, v{T1+r}, s{sP3h}, v{S4+o+r} mul:2'))
            for h in (0, 1): ops.append(A(f'v_cvt_pk_bf16_f32 v{O1+2*q+h}, v{T2+2*h}, v{T2+2*h+1}'))
            if n < npark:
                for h in (0, 1): ops.append(A(f'v_accvgpr_write_b32 a{12*j+2*q+h}, v{O1+2*q+h}'))
            else:
                w = stage_write(a128, a64, 0, j, f'v[{O1}:{O1+3}]', f'v[{O1+4}:{O1+5}]', ('Y1', 0))
                for x in w: x.notbefore = g_ok
                if q == 1: ops.append(w[0])
                if q == 2: ops.append(w[1])
            ops[-1].mark = ('odd', j, q)
    for o in ops:
        if o.cls == 'v': o.odd = True
    return ops

def morder():
    L = []
    if args.ord == 'v':
        for f in range(10):
            L += [(f - s, s, q) for s in range(3) if 0 <= f - s <= 7 for q in range(3)]
    else:
        for j in range(8):
            if j == 0 or (j == 7 and args.ord == 'c2'): L += [(j, s, q) for s in range(2) for q in range(3)]
            else: L += [(j, 0, 0), (j, 1, 0), (j, 1, 1), (j, 0, 1), (j, 0, 2), (j, 1, 2)]
            if j: L += [(j - 1, 2, q) for q in range(3)]
        L += [(7, 2, q) for q in range(3)]
    assert len(L) == 72 and len(set(L)) == 72
    return L
MO = morder()
VF = [min(m for m, (j, s, q) in enumerate(MO) if j + s == f) for f in range(10)]
VL = [max(m for m, (j, s, q) in enumerate(MO) if j + s == f) for f in range(10)]
UF = {(s, q): min(m for m, x in enumerate(MO) if x[1:] == (s, q)) for s in range(3) for q in range(3)}
UL = {(s, q): max(m for m, x in enumerate(MO) if x[1:] == (s, q)) for s in range(3) for q in range(3)}
AF = {(j, q): min(m for m, x in enumerate(MO) if (x[0], x[2]) == (j, q)) for j in range(8) for q in range(3)}
AL = {(j, q): max(m for m, x in enumerate(MO) if (x[0], x[2]) == (j, q)) for j in range(8) for q in range(3)}
def mfma_list(t):
    pos, c = sub(t)
    L = []
    for m, (j, s, q) in enumerate(MO):
        d = acc(pos, j, q)
        cc = '0' if (t < 4 and AF[(j, q)] == m) else d
        L.append(Op(f'v_mfma_f32_16x16x32_bf16 {d}, {ufrag(t,s,q)}, {vfrag(10*t+j+s)}, {cc}', 'mfma', None,
                    [('U', t, s), ('V', 10 * t + j + s)]))
    return L

BARS = [0, 3, 7, 11, 15, 16, 19, 23] + ([24] if args.pl1 else []) + [25, 26, 28, 29, 30, 34, 35]
B35G = args.b35
NJ35 = args.nj35
B0G = args.b0g
AY, AY2, AYR = S3 + 4, S3 + 5, S3 + 6
UG = [int(x) for x in (args.ug or {'v': '57,60,65,69,73,77,81,85,88', 'c2': '60,64,67,70,75,79,83,87,90', 'c2f': '65,67,70,73,76,80,84,87,90'}[args.ord]).split(',')]
XG0 = args.xg
CAP = {None: 2, 's': 2, 'r': 1, 'l4': 0, 'l2': 0, 'w8': 0, 'w16': 0, 'st': 2, 'bar': 0}
RES = {'l4': ('vm', 3), 'l2': ('vm', args.xsp), 'st': ('vm', 3), 'w8': ('wr', 2), 'w16': ('wr', 4)}
PEN = {'w8': 4, 'w16': 12, 'st': 12, 'bar': 8}
N = 36 * 72
STG = set(int(x) for x in args.stg.split(',') if x)

class Sched:
    def __init__(s):
        s.head = [None] * N; s.body = [[] for _ in range(N)]
        s.busy = {'vm': [False] * N, 'wr': [False] * N}
        s.resv = True; s.xsub = set(); s.nolds = [False] * N; s.marks = {}
    def cap(s, g): return CAP[s.head[g].cls if s.head[g] is not None else None]
    def fix(s, g, o):
        g %= N
        assert s.head[g] is None, (g // 72, g % 72, o.cls, s.head[g].cls)
        s.head[g] = o
        if o.cls in RES:
            r, k = RES[o.cls]
            for i in range(k): s.busy[r][(g + i) % N] = True
    def try_place(s, ops, g0, g1, rho, phi, relax=0):
        plan = []; g = g0; n = len(ops)
        hd = {}; bd = {}; bz = set()
        def extra(g): return int((g + 1) * phi) - int(g * phi)
        own_body_at = -1
        for k, o in enumerate(ops):
            g = max(g, g0 + int(rho * k * (g1 - g0) / n))
            if o.notbefore is not None: g = max(g, o.notbefore)
            while True:
                if g > g1: return None
                G = g % N
                h = s.head[G] if s.head[G] is not None else hd.get(G)
                nb = len(s.body[G]) + bd.get(G, 0)
                capn = CAP[h.cls if h is not None else None] + extra(g)
                if o.cls != 'v' and h is None and own_body_at < g and nb <= CAP[o.cls] + extra(g):
                    ok = not (s.resv and o.cls != 'st' and (G % 72) in STG and G // 72 in s.xsub)
                    if o.cls in ('r', 'w8', 'w16', 'st') and s.nolds[G]: ok = False
                    if o.cls == 'st' and STG and (G // 72 in s.xsub or (G % 72 < 17 and (G // 72 - 1) % 36 in s.xsub and False)):
                        ok = (G % 72) in STG; r, kk = 'vm', 1
                    elif ok and o.cls in RES:
                        r, kk = RES[o.cls]; kk = max(1, kk - relax)
                        ok = not any(s.busy[r][(g + i) % N] or (r, (g + i) % N) in bz for i in range(kk))
                    if ok:
                        hd[G] = o; plan.append((g, 'h', o))
                        if o.cls in RES:
                            for i in range(kk): bz.add((r, (g + i) % N))
                        break
                if o.cls in ('v', 's') and nb < capn:
                    bd[G] = bd.get(G, 0) + 1; plan.append((g, 'b', o)); own_body_at = g
                    break
                g += 1
        return plan
    def place(s, ops, g0, g1, spread=True):
        tries = [(r / 10, 0.0) for r in range(10 if spread else 0, -1, -1)] + [(0.0, p / 20) for p in range(1, 61)]
        tries = [(r, p, x) for x in (0, 1, 2) for (r, p) in tries]
        for rho, phi, relax in tries:
            plan = s.try_place(ops, g0, g1, rho, phi, relax)
            if plan is not None:
                if relax or phi: print(f'  stream {g0//72}:{g0%72}..{g1//72}:{g1%72} relax {relax} overflow {phi}')
                break
        else: raise Exception(f'cannot place stream in {g0//72}:{g0%72}..{g1//72}:{g1%72}')
        for g, k, o in plan:
            if k == 'h': s.fix(g, o)
            else: s.body[g % N].append(o)
            if hasattr(o, 'mark'): s.marks[o.mark] = g
            o.at = g
        return plan[-1][0]
    def late_wait(s, w, lo, hi):
        for g in range(hi, lo - 1, -1):
            if s.head[g % N] is None:
                s.fix(g, w); return
            if isinstance(s.head[g % N], Wait):
                s.head[g % N] = Wait(list(s.head[g % N].tags) + list(w.tags)); return
        s.body[hi % N].append(w)
    def cycles(s, t):
        c = 0
        for g in range(72 * t, 72 * t + 72):
            h = s.head[g]
            c += 16 + (PEN.get(h.cls, 0) if h is not None else 0) + 4 * max(0, len(s.body[g]) - s.cap(g))
        return c

def build_body():
    S = Sched()
    vissue = {}
    for t in range(36):
        b = 72 * t
        if t in BARS:
            gb = B0G if t == 0 else (B35G if t == 35 else 62)
            S.fix(b + gb - 1, Grp([Stamp(1 + BARS.index(t)), LgAll()], 's')); S.fix(b + gb, BarOnly())
        for f in range(10):
            gend = VL[f]
            if f == 7: gend = max(gend, 63)
            assert gend not in (61, 62)
            S.fix(b + gend, vread(10 * t + f + 3)); vissue[(10 * t + f + 3) % 360] = b + gend
    for t in range(36):
        b = 72 * t
        if 'nou' not in EXP:
            for i in range(9):
                assert UG[i] >= UL[(i // 3, i % 3)]
                S.fix(b + UG[i], uload(t + 2, i // 3, i % 3))
            for i in (0, 3, 6):
                lo = UG[i - 1] if i else UG[8] - 72
                g = next(g for g in range(UG[i] - 1, lo, -1) if S.head[(b + g) % N] is None)
                S.fix(b + g, usoff(t + 2, i // 3))
    wins = [(T, T // 4 + 1, T % 4) for T in range(20)] + [(31 + h, 0, h) for h in range(4)]
    if 'noprod' in EXP: wins = []
    S.xsub = set((T - 2) % 36 for (T, c, h) in wins)
    PF = {}
    for spec in args.pf.split(','):
        if spec: PF.setdefault(int(spec[:-3]), []).append(lambda r, spec=spec: prefetch(r, int(spec[-2]), int(spec[-1]), spec[-3]))
    for (T, c, h) in wins:
        R = RAW + 12 * (T % 3); t = (T - 2) % 36
        ops = xloads(R, c, h, ('x', T))
        for i, f in enumerate(PF.pop(t, [])): ops = f(R + 10 - i) + ops
        gx = S.place(ops, 72 * t + XG0 - 4, 72 * t + 56, spread=False)
        if T == 19: g19 = gx
    if not wins: g19 = 72 * 17 + 50
    S.place([A(f's_add_u32 s{sTR}, s{sTR}, 8'), Grp([A(f's_cmp_eq_u32 s{sGEN}, 1'), A(f's_cselect_b32 s{sTR}, 128, s{sTR}')], 'r')] + rows_setup(),
            g19 + 1, 72 * 18 + XG0 - 5)
    HR = RAW + 24
    ops = halo_loads(HR, ('x', 20))
    for i, f in enumerate(PF.pop(18, [])): ops = f(HR + 8 - i) + ops
    S.place(ops, 72 * 18 + XG0 - 4, 72 * 18 + 59, spread=False)
    for t, fs in PF.items():
        assert len(fs) == 1 and 19 <= t <= 23
        S.place(fs[0](RAW + (t & 1) if t < 23 else TMP + 4), 72 * t + XG0 - 4, 72 * t + 56, spread=False)
    a128, a64, arb = TMP, TMP + 1, TMP + 2
    aq = lambda r: f'a[{r}:{r+3}]'
    vq = lambda r: f'v[{r}:{r+3}]'
    G = lambda x: int(round(72 * x))
    gk = [(g8, k) for g8 in range(4) for k in range(3)]
    kg = [(g8, k) for k in range(3) for g8 in range(4)]
    SP = [float(x) for x in args.stp.split(',')]
    def stores(chunks, bufs, reads, sbase, rowoff, lab, g0, g1):
        ops = []
        for (g8, k), buf, rd in zip(chunks, bufs, reads):
            st = rb_store(buf, sbase, rowoff, g8, k, lab); st[1].notbefore = rd.at + 6
            ops += [st[0], Wait([(lab[0], g8, k)]), st[1]]; ops[-2].notbefore = rd.at + 5
        S.place(ops, g0, g1); return [o for o in ops if isinstance(o, Op) and o.cls == 'st']
    lab = ('Y2', 0)
    b2 = [vq(RAW + 12 + 4 * n) for n in range(4)] + [vq(RAW + 12), vq(RAW + 16)] + [aq(x) for x in (84, 88, 92, 96, 100, 104)]
    if not PL1: b2[6:] = [aq(96 + 4 * n) for n in range(6)]
    r2 = [rb_read(arb, 0, b2[n], *kg[n], lab) for n in range(12)]
    S.place(r2[:4], G(24), G(24) + 14, spread=False)
    d2 = (SP[1] - SP[0]) / 3
    s2 = stores(kg[:4], b2[:4], r2[:4], sOUT, 2 * ROWB, lab, G(SP[0]), G(SP[0] + d2))
    S.place(r2[4:6], s2[1].at + 2, s2[1].at + 20, spread=False)
    S.place(r2[6:], G(25) + 20, G(25) + 59)
    stores(kg[4:], b2[4:], r2[4:], sOUT, 2 * ROWB, lab, G(SP[0] + d2) + 1, G(SP[1]))
    y2w = {}
    for j in PL0:
        y2w[j] = stage_write(a128, a64, 0, j, f'v[{OA}:{OA+3}]', f'v[{OA+4}:{OA+5}]', lab)[::-1]
        S.place(y2w[j], G(23) + 63, G(23) + 71, spread=False)
    lab = ('Y1', 0)
    pk = []
    for j in range(args.npark): pk += stage_write(a128, a64, 0, j, f'a[{12*j}:{12*j+3}]', f'a[{12*j+4}:{12*j+5}]', lab)
    S.place(pk, G(25) + 64, G(26) + 30)
    b1 = [aq((108 if PL1 else 120) + 4 * n) for n in range(12)]
    r1 = [rb_read(arb, 0, b1[n], *kg[n], lab) for n in range(12)]
    S.place(r1[:4], G(26) + 64, G(27) + 30); S.place(r1[4:8], G(28) + 64, G(29) + 20); S.place(r1[8:], G(29) + 64, G(30) + 30)
    stores(kg, b1, r1, sOUT, 1 * ROWB, lab, G(SP[1]) + 1, G(SP[2]))
    lab = ('Y0', 0)
    cs = cvt_stage(S3, a128, a64, Y0U, lab, nb=lambda j: G(29) + max(AL[(j, q)] for q in range(3)) + 6,
                   after0=[A(f'v_mov_b32 v{AY}, v{a128}'), A(f'v_mov_b32 v{AY2}, v{a64}'), A(f'v_mov_b32 v{AYR}, v{arb}')])
    y0w = [o for o in cs if o.cls != 'v']; y0c = [o for o in cs if o.cls == 'v']
    S.place(y0w, G(29) + 64, G(30) + 59)
    b0 = [aq(4 * n) for n in range(12)]
    r0 = [rb_read(AYR, Y0U, b0[n], *gk[n], lab) for n in range(12)]
    S.place(r0, G(30) + 64, G(34) + 20)
    stores(gk, b0, r0, sOUT, 0, lab, G(SP[2]) + 1, G(SP[3]))
    nb3 = lambda j: G(35) + max(AL[(j, q)] for q in range(3)) + 6
    lab = ('Y3', 0)
    S.place(cvt_stage(S4, AY, AY2, Y3U, lab, js=range(3), nb=nb3), G(35) + 10, G(35) + B35G - 2, spread=False)
    S.place(cvt_stage(S4, AY, AY2, Y3U, lab, js=range(3, NJ35), nb=nb3), G(35) + B35G - 1, G(35) + 71, spread=False)
    b3 = [vq(S4 + 4 * n) for n in range(4)] + [vq(S4 + 64 + 4 * n) for n in range(8)]
    r3 = [rb_read(AYR, Y3U, b3[n], *kg[n], lab) for n in range(4)]
    S.place(r3, G(35) + B35G + 1, G(35) + 66, spread=False)
    lab = ('Y3', -1)
    ops = []
    for n in range(4): ops += rb_store(b3[n], sOUT3, 0, *kg[n], lab)
    g = S.place(ops, 0, 40, spread=False)
    S.place(cvt_stage(S4, AY, AY2, Y3U, lab, js=range(NJ35, 8), nb=lambda j: max(0, j - 5)), 0, B0G - 2, spread=False)
    r3 = [rb_read(AYR, Y3U, b3[n], *kg[n], lab) for n in range(4, 12)]
    S.place(r3, B0G + 1, G(1) + 40)
    stores(kg[4:], b3[4:], r3, sOUT3, 0, lab, max(g + 1, B0G + 6), G(args.y3end))
    S.resv = False
    S.place(y0c, G(29) + 20, G(30) + 30, spread=False)
    for i, o in enumerate(cs):
        if o.cls != 'v': assert cs[i - 1].at < o.at
    S.place(stage_addr(a128, a64, TMP + 3) + [A(f'v_add_u32 v{arb}, s{sRB}, v{vU}')], G(21) + 2, G(21) + 20, spread=False)
    et = [(j, q) for j in PL0 + [x for x in range(8) if x not in PL0 + PL1] for q in range(3)][:max(0, args.nearly - 3 * len(PL1))]
    et += [(j, q) for j in PL1 for q in range(3)]
    ops = early_ab(et, lambda j, q: G(21) + AL[(j, q)] + 6)
    for j in PL0: ops += even_plain(j, RAW + 12, RAW + 16, OA, lambda j, q: G(23) + AL[(j, q)] + 6)
    if ops:
        ge = S.place(ops, G(21) + 10, G(23) + (62 if PL0 else 71), spread=False); print(f'  early end {ge/72:.2f}')
    g0 = G(24)
    for j in PL1:
        w = stage_write(a128, a64, 0, j, f'v[{RAW}:{RAW+3}]', f'v[{RAW+4}:{RAW+5}]', ('Y2', 0))
        g0 = S.place(even_plain(j, RAW + 28, RAW + 32, RAW) + w[::-1], g0, G(24) + 59, spread=False)
        for q in range(3): assert S.marks[('y0', j, q)] < G(24) + AF[(j, q)] - 1
        g0 = min(x.at for x in w)
    S.place(odd_part(a128, a64, args.npark, G(25) + 63, list(range(8))), g0, G(29) + 59, spread=False)
    M = S.marks
    print('  odd progress', ' '.join(f'{M[("odd",j,2)]/72:.2f}' for j in range(8)))
    owner = lambda buf: divmod((int(buf[2:buf.index(':')]) - 96) // 4, 3)
    for buf, rd in list(zip(b2, r2)) + list(zip(b1, r1)):
        if buf[0] == 'a' and int(buf[2:buf.index(':')]) >= 96: assert M[('odd',) + owner(buf)] < rd.at, buf
    for j in range(args.npark): assert M[('odd', j, 2)] < pk[2 * j].at
    for (T, c, h) in wins:
        R = RAW + 12 * (T % 3)
        if h == 1:
            S.place(halo_copy(c, R, int(T > 30)), 72 * T + 64, 72 * (T + 1) + XG0 - 5)
        if T == 16:
            gl = next(g for g in range(63, 72) if S.head[72 * 16 + g] is None)
            S.fix(72 * 16 + gl, vwrites(R, c, h)[1][4])
    Ts = [w_[0] for w_ in wins]
    for (T, c, h) in wins:
        R = RAW + 12 * (T % 3)
        ad, w = vwrites(R, c, h, int(T > 30))
        tr = transform(R, ('x', T))
        if T - 1 in Ts: tr = tr[9:]
        wl = [w[pos] for pos in (1, 2, 3, 0, 5, 4) if not (T == 16 and pos == 4)]
        if T + 1 in Ts:
            hd = transform(RAW + 12 * ((T + 1) % 3), ('x', T + 1))[:9]
            wl = [wl[0]] + hd[0:3] + [wl[1]] + hd[3:5] + [wl[2]] + hd[5:7] + [wl[3]] + hd[7:9] + wl[4:]
        g0 = 72 * (T - 1) + (gl + 1 if T == 17 else 60) if T != 0 else 0
        if T == 0: w[1].notbefore = B0G + 1
        S.place(tr + [ad] + wl, g0, 72 * T + 59)
    S.place(transform(HR, ('x', 20)) + halo_writes(HR, 1), 72 * 19 + 63, 72 * 21 + 1)
    for t in range(36):
        b = 72 * t
        for s_ in range(3):
            m = min(UF[(s_, q)] for q in range(3)); S.late_wait(Wait([('U', t, s_)]), b + m - 3, b + m - 1)
        for f in range(10):
            F = 10 * t + f; hi = b + VF[f] - 1
            iss = vissue[F]
            if iss > hi: iss -= N
            S.late_wait(Wait([('V', F)]), max(iss + 4, hi - 6), hi)
    return S

def emit_body(E, S):
    for t in range(36):
        if t == 24 and 'noburst' not in EXP: burst(E)
        ml = mfma_list(t)
        if getattr(E, 'labels', False): E.raw(f'sub{t}:')
        for m in range(72):
            E.op(ml[m])
            g = 72 * t + m
            if args.fine >= 0 and m == 0: E.e(('s_memrealtime' if args.rt else 's_memtime') + ' s[98:99]')
            if args.fine >= 0 and m == 40:
                E.e(f's_cmp_eq_u32 s{sGEN}, {args.fine}'); E.e(f's_cselect_b32 s{60+t}, s98, s{60+t}')
            if S.head[g] is not None: E.op(S.head[g])
            for o in S.body[g]: E.op(o)

def srd(E, d, b, n):
    E.e(f's_mov_b32 s{d}, s{b}'); E.e(f's_and_b32 s{d+1}, s{b+1}, 0xffff')
    E.e(f's_mov_b32 s{d+2}, {n}'); E.e(f's_mov_b32 s{d+3}, 0x20000')

NWT = 54
PADS = 'nopads' not in EXP
def PS(E, k):
    if args.pro:
        E.e('s_memtime s[94:95]'); E.e('s_waitcnt lgkmcnt(0)'); E.e('s_sub_u32 s94, s94, s96'); E.e(f'v_writelane_b32 v90, s94, {k}')
def wt_task(E):
    wt_addr(E); wt_loads(E); E.e('s_waitcnt vmcnt(0)'); wt_comp(E)
def wt_addr(E):
    e = E.e
    e('s_mul_i32 s73, s70, 43691'); e('s_lshr_b32 s73, s73, 17')
    e('s_mul_i32 s74, s73, 3'); e('s_sub_u32 s74, s70, s74')
    e('s_mul_i32 s75, s73, 43691'); e('s_lshr_b32 s75, s75, 17')
    e('s_mul_i32 s76, s75, 3'); e('s_sub_u32 s76, s73, s76')
    e('v_and_b32 v101, 15, v2'); e('v_lshrrev_b32 v102, 4, v2'); e('v_and_b32 v103, 12, v101')
    e('s_lshl_b32 s78, s74, 2'); e('s_cmp_lt_u32 s74, 2'); e('s_cselect_b32 s77, 1, 0'); e('s_cselect_b32 s78, s78, 32')
    e('v_mul_u32_u24 v103, s77, v103'); e('v_add_u32 v103, v103, v101'); e('v_add_u32 v103, s78, v103')
    e(f'v_lshl_add_u32 v103, v103, 1, s{sW96}')
    e('v_mul_u32_u24 v104, 3072, v102'); e('v_add_u32 v103, v103, v104')
    e('s_mul_i32 s79, s76, 73728'); e('s_mul_i32 s80, s75, 12288'); e('s_add_u32 s79, s79, s80')
    e('s_add_u32 s80, s79, 221184'); e('s_add_u32 s81, s79, 442368')
def wt_loads(E):
    e = E.e
    for r in range(3):
        for k in range(8):
            e(f'buffer_load_ushort v{110+r*8+k}, v103, s[60:63], s{79+r} offen offset:{k*384}')
    e('s_mul_i32 s82, s76, 3072'); e('s_lshl_b32 s83, s74, 10'); e('s_add_u32 s82, s82, s83')
    e('s_mul_i32 s83, s75, 36864'); e('s_lshl_b32 s84, s83, 2'); e('s_add_u32 s83, s83, s82'); e('s_add_u32 s84, s84, s82')
def wt_comp(E):
    e = E.e
    for i in range(24): e(f'v_lshlrev_b32 v{110+i}, 16, v{110+i}')
    f1 = 2 * P * P * (P * P - Q * Q); f3 = 2 * Q * Q * (Q * Q - P * P)
    al, be = Fr(1), Q ** 2
    def put(pos, src):
        O = 152 + 4 * pos
        for k in range(4): e(f'v_cvt_pk_bf16_f32 v{O+k}, v{src+2*k}, v{src+2*k+1}')
        if pos == 0: e(f's_add_u32 s85, s83, {24*36864}')
        elif pos == 5: e(f's_add_u32 s85, s83, {30*36864}')
        else: e(f's_add_u32 s85, s84, {(pos-1)*36864}')
        e(f'buffer_store_dwordx4 v[{O}:{O+3}], v{vU}, s[8:11], s85 offen sc1')
    for (pos, g, z) in ((1, al / f1, P), (3, be / f3, Q)):
        for k in range(8):
            e(f'v_mul_f32 v{136+k}, {f32(g)}, v{110+k}'); e(f'v_fmac_f32 v{136+k}, {f32(g*z*z)}, v{126+k}')
            e(f'v_fmamk_f32 v{144+k}, v{118+k}, {f32(g*z)}, v{136+k}'); e(f'v_fmac_f32 v{136+k}, {f32(-g*z)}, v{118+k}')
        put(pos, 144); put(pos + 1, 136)
    put(0, 110); put(5, 126)

KN = 'standalone__winograd__vision_kernel'
def main_kernel(E):
    e = E.e
    E.raw(f""".globl {KN}
.p2align 8
.type {KN},@function
{KN}:""")
    i0 = len(E.L); E.lds = verify.Lds()
    e('s_cmp_ge_u32 s2, 256'); e('s_cbranch_scc1 main_done')
    e('s_load_dwordx4 s[4:7], s[0:1], 0'); e('s_load_dwordx4 s[12:15], s[0:1], 16'); e('s_load_dwordx2 s[8:9], s[0:1], 32')
    if STAMP: e(f'{"s_memrealtime" if args.rt else "s_memtime"} s[96:97]'); e('s_memrealtime s[98:99]')
    if args.fine >= 0: e(('s_memrealtime' if args.rt else 's_memtime') + ' s[96:97]'); e('s_memrealtime s[98:99]'); e('s_waitcnt lgkmcnt(0)'); e('s_mov_b32 s97, s98')
    if 'nocpf' not in EXP:
        e('s_getpc_b64 s[92:93]'); E.raw('pcref:')
        e('v_and_b32 v70, 3, v0'); e('v_lshrrev_b32 v71, 6, v0'); e('v_lshl_add_u32 v70, v70, 7, v71')
        e('s_lshr_b32 s94, s2, 3'); e('s_lshl_b32 s94, s94, 2'); e('v_add_lshl_u32 v70, v70, s94, 7')
        e('v_min_u32 v70, code_end-pcref-4, v70')
        e('v_add_co_u32 v72, vcc, s92, v70'); e('v_mov_b32 v73, s93'); e('s_nop 0'); e('v_addc_co_u32 v73, vcc, 0, v73, vcc')
        E.op(VM('global_load_dword v76, v[72:73], off', 'c'))
    e('v_lshrrev_b32 v1, 6, v0'); e('v_and_b32 v2, 63, v0')
    e(f'v_readfirstlane_b32 s{sW}, v1')
    e(f'v_lshlrev_b32 v{vU}, 4, v2'); e('v_mov_b32 v98, 0')
    e('v_lshrrev_b32 v3, 3, v2'); e('v_and_b32 v4, 7, v2')
    e('v_mul_u32_u24 v5, 3072, v3'); e(f'v_lshl_add_u32 v{vXW}, v4, 3, v5')
    e(f's_lshr_b32 s{sT2}, s2, 3'); e(f's_and_b32 s{sCB}, s{sT2}, 3'); e(f's_lshr_b32 s{sT2}, s{sT2}, 2')
    e(f's_and_b32 s{sTR}, s2, 7'); e(f's_lshl_b32 s{sTR}, s{sTR}, 4'); e(f's_add_u32 s{sTR}, s{sTR}, s{sT2}')
    e(f's_and_b32 s90, s{sW}, 1'); e(f's_lshr_b32 s91, s{sW}, 1')
    e(f's_mul_i32 s{sH}, s90, 24576'); e(f's_mul_i32 s{sT3}, s91, 1536'); e(f's_add_u32 s{sH}, s{sH}, s{sT3}')
    e(f's_mul_i32 s{sPFD}, s{sW}, {ROWB}'); e(f's_sub_u32 s{sPFD}, s{sPFD}, s{sH}')
    e(f's_mul_i32 s{sWP}, s{sCB}, 49152'); e(f's_add_u32 s{sWP}, s{sWP}, s{sH}')
    E.op(rows_setup())
    e(f's_mul_i32 s{sW96}, s{sW}, 96'); e(f's_mul_i32 s{sT2}, s{sW}, 9216')
    e('s_mov_b32 s70, s2'); e(f'v_mov_b32 v80, v{vXW}')
    wt_addr(E)
    PR = [8 + 12 * i for i in range(5)]
    poll = lambda: E.op(VM('buffer_load_dword v97, v98, s[64:67], 0 offen offset:128 sc1', 'poll'))
    def xl(h):
        for r in range(6):
            E.op(VM(f'buffer_load_dwordx2 v[{PR[h]+2*r}:{PR[h]+2*r+1}], v80, s[4:7], s{sROW+r} offen offset:{h*384}', ('p', h)))
    nwt = 0 if "forcefb" in EXP else NWT
    e('s_waitcnt lgkmcnt(0)')
    if args.pro: e('v_mov_b32 v90, 0')
    PS(E, 0)
    srd(E, 60, 6, WB)
    e('s_and_b32 s5, s5, 0xffff'); e(f's_mov_b32 s6, {XB}'); e('s_mov_b32 s7, 0x20000')
    e(f's_add_u32 s8, s8, s{sT2}'); e('s_addc_u32 s9, s9, 0')
    e('s_and_b32 s9, s9, 0xffff'); e(f's_mov_b32 s10, {UB-3*9216}'); e('s_mov_b32 s11, 0x20000')
    srd(E, 64, 14, 256); e('s_mov_b64 s[68:69], s[14:15]')
    if 'notlb' not in EXP:
        e(f's_mov_b32 s10, {UB+4096}'); e(f's_mov_b32 s88, {UB}')
        e('buffer_load_dword v78, v98, s[8:11], s88 offen'); e('buffer_load_dword v79, v98, s[64:67], 0 offen offset:128 sc1')
    e(f's_cmp_lt_u32 s2, {nwt}'); e('s_cbranch_scc1 wt_path')
    E.vm = []
    if args.xdelay: e(f's_sleep {args.xdelay}')
    def helper():
        e('s_lshr_b32 s73, s2, 3'); e('s_sub_u32 s73, s73, 7'); e('s_lshl_b32 s74, s73, 2'); e(f's_add_u32 s74, s74, s{sW}')
        e('s_and_b32 s75, s2, 7'); e('s_lshl_b32 s75, s75, 9'); e('s_add_u32 s74, s74, s75'); e('s_mul_i32 s74, s74, 24576')
        e('s_cmp_lt_u32 s73, 18'); e(f's_cselect_b32 s74, s74, {OOB}'); e(f'v_mul_u32_u24 v81, 24, v{vU}')
        e('buffer_load_dword v81, v81, s[4:7], s74 offen')
    if args.help_at == 0: helper()
    xl(0)
    if args.help_at == 1: helper()
    xl(1)
    if args.help_at == 2: helper()
    e('s_branch wt_join')
    E.raw('wt_path:')
    vm0 = list(E.vm)
    wt_loads(E); PS(E, 1)
    e('s_waitcnt vmcnt(0)'); PS(E, 2)
    wt_comp(E); PS(E, 3); xl(0)
    E.raw('wt_join:')
    E.vm = list(vm0)
    PS(E, 5)
    e('s_and_b32 s13, s13, 0xffff'); e(f's_mov_b32 s14, {XB}'); e('s_mov_b32 s15, 0x20000')
    e('v_lshrrev_b32 v5, 4, v2'); e(f'v_mul_u32_u24 v6, {PLS}, v5'); e('v_lshrrev_b32 v5, 1, v5')
    e('v_lshl_add_u32 v6, v5, 6, v6'); e(f'v_and_b32 v5, 0xf0, v{vU}'); e(f'v_add_u32 v{vR}, v6, v5')
    e('v_lshrrev_b32 v6, 1, v4'); e(f'v_mul_u32_u24 v7, {PLS}, v6'); e('v_lshrrev_b32 v6, 1, v6'); e('v_lshl_add_u32 v7, v6, 6, v7')
    e('v_and_b32 v6, 1, v2'); e('v_lshl_add_u32 v7, v6, 3, v7'); e('v_lshl_add_u32 v7, v3, 4, v7')
    e(f's_lshl_b32 s{sT2}, s90, 7'); e(f's_mul_i32 s{sT3}, s91, 1056'); e(f's_add_u32 s{sT2}, s{sT2}, s{sT3}')
    e(f'v_add_u32 v7, s{sT2}, v7'); e(f'v_lshl_or_b32 v{vXW}, v7, 15, v{vXW}')
    e(f's_mul_i32 s{sRB}, s{sW}, {PLS}'); e(f's_lshl_b32 s{sT3}, s91, 6'); e(f's_add_u32 s{sRB}, s{sRB}, s{sT3}')
    e(f's_lshl_b32 s{sT3}, s90, 4'); e(f's_add_u32 s{sRB}, s{sRB}, s{sT3}')
    e(f's_mul_i32 s{sOUT}, s{sTR}, {4*ROWB}'); e(f's_mul_i32 s{sT3}, s{sCB}, 49152'); e(f's_add_u32 s{sOUT}, s{sOUT}, s{sT3}')
    e(f's_mul_i32 s{sT3}, s{sW}, 12288'); e(f's_add_u32 s{sOUT}, s{sOUT}, s{sT3}')
    e(f's_mov_b32 s{sOUT3}, {OOB}'); e(f's_mov_b32 s{sGEN}, 0')
    e(f's_lshl_b32 s{sT3}, s{sW}, 4'); e(f's_mov_b32 s{sEXM}, 0xfff'); e(f's_mov_b32 s{sEXM+1}, 0'); e(f's_lshl_b64 s[{sEXM}:{sEXM+1}], s[{sEXM}:{sEXM+1}], s{sT3}')
    e('s_mov_b32 s58, 0x0fff0fff'); e('s_mov_b32 s59, 0')
    for r, v in ((sNSIG, -SIG), (sNP2, -P * P), (sIK, 1 / KAP), (sP, P), (sNP, -P), (sNSK, -SIG / KAP), (sK, KAP),
                 (sP2, P * P), (sQT, 1 / (Q * Q)), (s2P, 2 * P), (sP3h, P ** 3 / 2)):
        e(f's_mov_b32 s{r}, {f32(v)}')
    e(f's_mov_b32 s{sMASK}, 0xffff0000')
    E.op(stage_addr(AY, AY2, AYR)); e(f'v_add_u32 v{AYR}, s{sRB}, v{vU}')
    if PADS:
        for r in [RAW, RAW + 1, RAW + 11, RAW + 23, RAW + 32, RAW + 35, TMP + 4]: e(f'v_mov_b32 v{r}, 0')
        e(f's_mov_b32 s{sT0}, 0')
    e(f's_cmp_gt_u32 s{sCB}, 0'); e(f's_cselect_b32 s{sT3}, 384, 0'); e(f's_cselect_b32 s{sT4+1}, 0, {OOB}')
    e(f's_add_u32 s{sH}, s{sH}, s{sT3}'); e(f's_add_u32 s{sT4}, s{sT3}, 49152')
    e(f's_cmp_eq_u32 s{sCB}, 3'); e(f's_cselect_b32 s{sT4}, {OOB}, s{sT4}')
    e('s_mov_b32 s56, 0xffff0000'); e('s_mov_b32 s57, 0')
    e(f's_cmp_ge_u32 s2, {nwt}'); e('s_cbranch_scc1 pub_skip')
    if PADS: e('s_branch do_warm'); E.raw('wt_ret:')
    e('s_mov_b32 s87, 1'); e(f's_cmp_lg_u32 s{sW}, 0')
    e('s_waitcnt vmcnt(6)'); e('s_barrier'); e('s_cbranch_scc1 wt_pub')
    e('s_atomic_add s87, s[68:69], 0 glc'); e('s_waitcnt lgkmcnt(0)'); PS(E, 4)
    e(f's_cmp_lg_u32 s87, {NWT-1}'); e('s_cbranch_scc1 wt_pub')
    e('s_atomic_add s87, s[68:69], 128')
    E.raw('wt_pub:')
    xl(1); E.vm = list(vm0)
    E.raw('pub_skip:')
    PS(E, 6)
    E.op(halo_loads(PR[4], 'ph'))
    for h in range(2, 4): xl(h)
    PS(E, 7)
    def uloads0():
        for i in range(9):
            if i % 3 == 0: E.op(usoff(0, i // 3))
            E.op(uload(0, i // 3, i % 3))
        for i in range(9):
            if UG[i] < 72:
                if i % 3 == 0: E.op(usoff(1, i // 3))
                E.op(uload(1, i // 3, i % 3))
        n1 = sum(g < 72 for g in UG)
        if n1 % 3 == 0: E.op(usoff(1, n1 // 3))
    EARLY = args.early
    for h in range(4):
        if h == EARLY - 1: poll()
        if args.x1at == h:
            for T in range(2): E.op(xloads(RAW + 12 * T, 1, T, ('x', T)))
        if h == EARLY:
            assert args.x1at <= h
            E.op(Wait(['poll'])); e('v_readfirstlane_b32 s72, v97'); e('s_nop 0'); e('s_cmp_eq_u32 s72, 0'); e('s_cbranch_scc1 not_yet')
            vm1 = list(E.vm); uloads0(); E.vm = vm1
            E.raw('not_yet:')
        E.op(transform_pk(PR[h], ('p', h), 176))
        ad, w = vwrites(PR[h], 0, h)
        E.op(ad)
        for pos in range(6): E.op(w[pos])
        PS(E, 8 + h)
        if h == args.haloat: E.op(transform_pk(PR[4], 'ph', 176)); E.op(halo_writes(PR[4], 0, True))
    PS(E, 12)
    if EARLY < 4: e('s_cmp_lg_u32 s72, 0'); e('s_cbranch_scc1 no_poll')
    poll()
    E.raw('no_poll:')
    if PADS:
        e(f's_cmp_lt_u32 s2, {nwt}'); e('s_cbranch_scc1 warm_done')
        E.raw('do_warm:')
        e('s_mov_b64 vcc, -1')
        for k in range(3): e(f's_cmp_eq_u32 s{sW}, {k}'); e(f's_cbranch_scc1 pad{k}')
        e('s_branch pad3')
        E.raw('warm_ret:'); e('s_mov_b64 vcc, 0')
        e(f's_cmp_lt_u32 s2, {nwt}'); e('s_cbranch_scc1 wt_ret')
        E.raw('warm_done:')
    e('s_mov_b32 s86, 0')
    if EARLY < 4: e('s_cmp_lg_u32 s72, 0'); e('s_cbranch_scc1 u_done')
    E.op(Wait(['poll']))
    PS(E, 13)
    E.raw('poll_loop:')
    e('v_readfirstlane_b32 s87, v97'); e('s_add_u32 s86, s86, 1')
    e('s_cmp_lg_u32 s87, 0'); e('s_cbranch_scc1 u_ready')
    e('buffer_load_dword v97, v98, s[64:67], 0 offen offset:128 sc1')
    e('s_cmp_lt_u32 s86, 512'); e('s_waitcnt vmcnt(0)'); e('s_cbranch_scc1 poll_loop')
    e('s_mov_b32 s70, 0'); e('s_branch wt_loop')
    E.raw('u_ready:')
    PS(E, 14)
    uloads0()
    E.raw('u_done:')
    if args.pro: e('v_writelane_b32 v90, s86, 17')
    E.op(Bar())
    for F in range(3): E.op(vread(F))
    E.op(Stamp(0))
    for i in range(args.idle): e('s_sleep 37')
    PS(E, 15)
    pro_vm = list(E.vm); iw = len(E.L); e('s_waitcnt vmcnt(0) lgkmcnt(0)')
    if args.pro:
        PS(E, 16)
        e('s_mov_b32 s10, 0x400000'); e('s_lshl_b32 s94, s2, 10'); e('s_add_u32 s94, s94, 0x300000'); e(f's_mul_i32 s95, s{sW}, {9216-256}'); e('s_sub_u32 s94, s94, s95')
        e(f'v_lshrrev_b32 v91, 2, v{vU}'); e('buffer_store_dword v90, v91, s[8:11], s94 offen'); e('s_waitcnt vmcnt(0)'); e(f's_mov_b32 s10, {UB-3*9216}')
    S = build_body()
    E2 = Emit(); emit_body(E2, S)
    E.vm = list(E2.vm); E.lg = list(E2.lg); st = (list(E.vm), list(E.lg)); E.late = 0
    k = 0
    while k < len(pro_vm) and k < len(E2.vm) and pro_vm[-1 - k] == E2.vm[-1 - k]: k += 1
    E.L[iw] = f'    s_waitcnt vmcnt({k}) lgkmcnt(0)'
    print('entry vmcnt', k)
    lds = E.lds; E.lds = None
    if PADS: e('s_branch blk_loop'); E.raw('.p2align 12')
    else: E.raw('.p2align 6')
    E.raw('blk_loop:'); i1 = len(E.L)
    E.labels = True
    emit_body(E, S)
    print('late (unplanned) waits in body:', E.late)
    assert (E.vm, E.lg) == st, (E.vm, st)
    e(f's_add_u32 s{sOUT3}, s{sOUT}, {3*ROWB}'); e(f's_add_u32 s{sOUT}, s{sOUT}, {32*ROWB}')
    e(f's_add_u32 s{sGEN}, s{sGEN}, 1'); e(f's_cmp_lt_u32 s{sGEN}, 2'); e('s_cbranch_scc1 blk_loop')
    def tail(E):
        lab = ('Y3', -1)
        kg = [(g8, k) for k in range(3) for g8 in range(4)]
        buf = lambda n: f'v[{S3+16+4*(n-4)}:{S3+16+4*(n-4)+3}]'
        cs = cvt_stage(S4, AY, AY2, Y3U, lab, js=range(NJ35, 6))
        E.op(cs)
        for n in range(4): E.op(rb_store(f'v[{S4+4*n}:{S4+4*n+3}]', sOUT3, 0, *kg[n], lab))
        E.op(Bar())
        for n in range(4, 8): E.op(rb_read(AYR, Y3U, buf(n), *kg[n], lab))
        E.op(cvt_stage(S4, AY, AY2, Y3U, lab, js=range(6, 8)))
        for n in range(4, 8): E.op(rb_store(buf(n), sOUT3, 0, *kg[n], lab))
        E.op(Bar()); lo = 8
        for n in range(lo, 12): E.op(rb_read(AYR, Y3U, buf(n), *kg[n], lab))
        for n in range(lo, 12): E.op(rb_store(buf(n), sOUT3, 0, *kg[n], lab))
    i2 = len(E.L)
    V = Emit(); V.lds = lds; V.vm = list(E.vm); V.lg = list(E.lg)
    V.blk = 0; emit_body(V, S); V.blk = 1; emit_body(V, S); V.blk = 2; tail(V)
    tail(E)
    errs = verify.check(E.L[i0:i2] + E.L[i1:]) + lds.errs
    for x in errs[:30]: print('VERIFY:', x)
    print('verify errors:', len(errs))
    if STAMP:
        e('s_waitcnt vmcnt(0)')
        e(f'{"s_memrealtime" if args.rt else "s_memtime"} s[92:93]'); e('s_memrealtime s[94:95]')
        e('s_load_dwordx2 s[16:17], s[0:1], 24'); e('s_waitcnt lgkmcnt(0)')
        e(f's_cmp_lg_u32 s2, {args.fwg}'); e('s_cbranch_scc1 main_done'); e(f's_cmp_lg_u32 s{sW}, 0'); e('s_cbranch_scc1 main_done')
        srd(E, 4, 16, 256)
        e('v_mov_b32 v1, 0')
        n = len(BARS) + 1
        def put(k):
            e(f'v_mov_b32 v2, s{sT0}'); e(f'buffer_store_dword v2, v1, s[4:7], 0 offen offset:{4*k}')
            if k == args.probe: e(f's_mov_b32 s{sT1}, s{sT0}')
        e(f's_sub_u32 s{sT0}, s92, s96'); put(0)
        e(f's_sub_u32 s{sT0}, s94, s98'); put(1)
        e(f's_sub_u32 s{sT0}, s60, s96'); put(2)
        e(f's_sub_u32 s{sT0}, s62, s60'); put(3)
        for k in range(2, n):
            e(f's_sub_u32 s{sT0}, s{60+2*k}, s{60+2*(k-1)}'); put(2 + k)
        e(f's_sub_u32 s{sT0}, s92, s{60+2*(n-1)}'); put(2 + n)
        if args.probe >= 0:
            e(f's_min_u32 s{sT1}, s{sT1}, 400000')
            if args.rt: e(f's_min_u32 s{sT1}, s{sT1}, 20000'); e(f's_lshl_b32 s{sT1}, s{sT1}, 3')
            else: e(f's_lshr_b32 s{sT1}, s{sT1}, 2'); e(f's_mul_i32 s{sT1}, s{sT1}, 1638'); e(f's_lshr_b32 s{sT1}, s{sT1}, 10')
            E.raw('spin:'); e('s_memrealtime s[90:91]'); e('s_waitcnt lgkmcnt(0)'); e('s_sub_u32 s90, s90, s94'); e(f's_cmp_lt_u32 s90, s{sT1}'); e('s_cbranch_scc1 spin')
    if args.fine >= 0:
        e('s_waitcnt vmcnt(0)'); e(('s_memrealtime' if args.rt else 's_memtime') + ' s[98:99]'); e('s_memrealtime s[56:57]')
        e('s_load_dwordx2 s[16:17], s[0:1], 32'); e('s_waitcnt lgkmcnt(0)')
        e(f's_cmp_lg_u32 s{sW}, 0'); e('s_cbranch_scc1 main_done')
        srd(E, 4, 16, 0x400000)
        e('s_lshl_b32 s16, s2, 8'); e('s_add_u32 s16, s16, 0x200000'); e('v_mov_b32 v1, 0')
        for k in range(41):
            if k == 0: e(f's_sub_u32 s{sT0}, s60, s96')
            elif k < 36: e(f's_sub_u32 s{sT0}, s{60+k}, s{59+k}')
            elif k == 36: e(f's_sub_u32 s{sT0}, s98, s95')
            elif k == 37: e(f's_sub_u32 s{sT0}, s98, s96')
            elif k == 38: e(f's_mov_b32 s{sT0}, s97')
            elif k == 39: e(f's_mov_b32 s{sT0}, s56')
            elif k == 40: e(f's_getreg_b32 s{sT0}, hwreg(HW_REG_XCC_ID)')
            e(f'v_mov_b32 v2, s{sT0}'); e(f'buffer_store_dword v2, v1, s[4:7], s16 offen offset:{4*k}')
    E.raw('main_done:'); e('s_endpgm')
    E.raw('code_end:')
    E.raw('wt_loop:')
    wt_task(E)
    e('s_add_u32 s70, s70, 1'); e(f's_cmp_lt_u32 s70, {NWT}'); e('s_cbranch_scc1 wt_loop')
    e('s_waitcnt vmcnt(0)'); e('s_branch u_ready')
    return S

def kd(name, vg, acc_off, sg):
    return f""".amdhsa_kernel {name}
  .amdhsa_next_free_vgpr {vg}
  .amdhsa_next_free_sgpr {sg}
  .amdhsa_accum_offset {acc_off}
  .amdhsa_group_segment_fixed_size 0
  .amdhsa_kernarg_size 40
  .amdhsa_user_sgpr_count 2
  .amdhsa_user_sgpr_kernarg_segment_ptr 1
  .amdhsa_system_sgpr_workgroup_id_x 1
  .amdhsa_ieee_mode 0
.end_amdhsa_kernel"""

def add_pads(E):
    import subprocess, re, tempfile
    i1 = E.L.index('blk_loop:'); i2 = E.L.index('main_done:')
    tmp = tempfile.mkdtemp()
    txt = '\n'.join(l for l in E.L if l != '.p2align 3') + '\n.text\n' + ''.join(f'pad{k}:\n' for k in range(4))
    open(tmp + '/a.s', 'w').write(txt)
    subprocess.run(['clang', '-x', 'assembler', '-target', 'amdgcn-amd-amdhsa', '-mcpu=gfx950', '-c', tmp + '/a.s', '-o', tmp + '/a.o'], check=True)
    dis = subprocess.run(['llvm-objdump', '-d', '--mcpu=gfx950', tmp + '/a.o'], capture_output=True, text=True).stdout
    dis = dis[dis.index('<blk_loop>:' if '<blk_loop>:' in dis else '<sub0>:'):]
    sizes = [4 * len(m.group(1).split()) for m in re.finditer(r'// [0-9A-F]{12}: ((?:[0-9A-F]{8} ?)+)', dis)]
    out = []; addr = 0; n = 0; pads = []; want = 0; inburst = False
    for l in E.L[i1 + 1:i2]:
        if l == '.p2align 3':
            if addr % 8: out.append('    s_nop 0'); addr += 4
            inburst = True
            continue
        out.append(l)
        if not l.startswith('    '): continue
        addr += sizes[n]; n += 1
        mf = l.strip().startswith('v_mfma')
        if mf: inburst = False
        if addr >= want and (mf or inburst):
            pads.append(len(out)); out.append(None); addr += 4
            if inburst: out.append('    s_nop 0'); addr += 4
            want += 4096
    for k, i in enumerate(pads):
        out[i] = f'pad{k}:\n    s_cbranch_vccnz ' + (f'pad{k+4}' if k + 4 < len(pads) else 'warm_ret')
    E.L[i1 + 1:i2] = out
    print('pads', len(pads), 'loop+tail bytes', addr)

def main():
    E = Emit()
    E.raw("""; 3x3 conv via 1D Winograd F(4,3) along H + direct taps along W (generated by gen/gen10.py)
; @launch grid=(256,1,1) block=(256,1,1) lds=163840
.amdgcn_target "amdgcn-amd-amdhsa--gfx950"
.text""")
    load = main_kernel(E)
    E.raw('.section .rodata,"a"\n.p2align 6')
    E.raw(kd(KN, 512, 256, 102))
    if PADS: add_pads(E)
    open(args.out, 'w').write('\n'.join(E.L) + '\n')
    print(' '.join(f'{t}:{load.cycles(t)}' for t in range(36)), ' total', sum(load.cycles(t) for t in range(36)))
main()
```

```python
import sys, struct, argparse, os
sys.path.insert(0, os.path.dirname(os.path.abspath(__file__)))
import verify
from fractions import Fraction as Fr

ap = argparse.ArgumentParser()
ap.add_argument('out', nargs='?', default='standalone__winograd__vision.s')
ap.add_argument('--stamp', action='store_true')
ap.add_argument('--pro', action='store_true')
ap.add_argument('--help_at', type=int, default=9)
ap.add_argument('--early', type=int, default=9)
ap.add_argument('--haloat', type=int, default=1)
ap.add_argument('--rt', action='store_true')
ap.add_argument('--psleep', type=int, default=0)
ap.add_argument('--xdelay', type=int, default=0)
ap.add_argument('--idle', type=int, default=0)
ap.add_argument('--idle2', type=int, default=0)
ap.add_argument('--fine', type=int, default=-1)
ap.add_argument('--fwg', type=int, default=0)
ap.add_argument('--exp', default='')
ap.add_argument('--upol', default=' sc1')
ap.add_argument('--xpol', default='')
ap.add_argument('--xpol2', default='')
ap.add_argument('--xr2', default='012345')
ap.add_argument('--spol', default=' sc1')
ap.add_argument('--pollat', type=int, default=9)
ap.add_argument('--chkat', type=int, default=4)
ap.add_argument('--x1at', type=int, default=2)
ap.add_argument('--fpol', default='')
ap.add_argument('--pf', default='18f00,20f01,21f02,23f03')
ap.add_argument('--pl0', default='0')
ap.add_argument('--pl1', default='7')
ap.add_argument('--nearly', type=int, default=10)
ap.add_argument('--xg2', type=int, default=0)
ap.add_argument('--xsp2', type=int, default=4)
ap.add_argument('--xl2', type=int, default=1)
ap.add_argument('--npark', type=int, default=2)
ap.add_argument('--b35', type=int, default=51)
ap.add_argument('--ns35', type=int, default=8)
ap.add_argument('--skew', type=int, default=1)
ap.add_argument('--uearly', type=int, default=1)
ap.add_argument('--w31', type=float, default=30.1)
ap.add_argument('--xw', type=int, default=46)
ap.add_argument('--xw2', type=int, default=26)
ap.add_argument('--spols', default='nnnnn')
ap.add_argument('--b34', type=int, default=70)
ap.add_argument('--b0g', type=int, default=15)
ap.add_argument('--nj35', type=int, default=7)
ap.add_argument('--y3end', type=float, default=1.4)
ap.add_argument('--stg', default='66,6,14,18,22,54,57')
ap.add_argument('--stp', default='24.1,27.0,31.1,34.97')
ap.add_argument('--upf', default='31,1,7,12,18,25')
ap.add_argument('--ord', default='c2')
ap.add_argument('--ug', default='')
ap.add_argument('--xug', default='24,27,31,35,39,43,47,51,56')
ap.add_argument('--xg', type=int, default=26)
ap.add_argument('--xsp', type=int, default=5)
ap.add_argument('--probe', type=int, default=-1)
args = ap.parse_args()
XR2 = [int(c) for c in args.xr2]
EXP = set(x for x in args.exp.split(',') if x)
STAMP = args.stamp

def f32(x): return '0x%08x' % struct.unpack('<I', struct.pack('<f', float(x)))[0]

P = Fr(9, 16); Q = Fr(2); SIG = P * P + Q * Q; KAP = P * P * Q * Q
XB = 512 * 512 * 192 * 2
WB = 9 * 192 * 192 * 2
UB = 36 * 36864
ROWB = 512 * 384
OOB = 0x7F000000

UNIT = 2080
PLS = 40704
def plane(g): return g * PLS + (g >> 1) * 64
HOFF = 19 * UNIT
DUMMY = plane(3) + HOFF + 1152
assert DUMMY + 256 <= 163840
def rowpos(phi): return (48 - 16 * phi) if phi < 4 else (114 - 16 * (phi - 4))
B0U = {1: 7, 2: 8, 3: 9, 4: 10, 5: 11, 0: 16}
B5U = {2: 12, 3: 13, 4: 14, 5: 15, 0: 17, 1: 18}
Y0U, Y3U = 6, 8
def unit(pos, c):
    if pos == 0: return B0U[c]
    if pos == 5: return B5U[c]
    k = pos - 1
    if c % 2 == 0: return k
    if k < 3: return 4 + k
    return 0 if c == 5 else B5U[5]
def sub(t):
    if t < 24: return 1 + (t & 3), t >> 2
    if t < 30: return 0, (t - 23) % 6
    return 5, t - 30
SLOT = {0: 0, 1: 1, 4: 2, 3: 3, 2: 4, 5: 5}

S3, S4 = 0, 96
RAW = 192
VRING = 228
TMP = 248
vR, vU, vXW = 253, 254, 255
def acc(pos, j, q):
    o = (j * 3 + q) * 4
    if pos == 1: return f'a[{o}:{o+3}]'
    if pos == 2: return f'a[{96+o}:{96+o+3}]'
    if pos in (3, 0): return f'v[{S3+o}:{S3+o+3}]'
    return f'v[{S4+o}:{S4+o+3}]'
def ufrag(t, s, q):
    if t >= 34:
        o = 96 + ((t - 34) * 9 + s * 3 + q) * 4
        return f'a[{o}:{o+3}]'
    i = (t & 1) * 9 + s * 3 + q
    if i < 16: return f'a[{192+4*i}:{192+4*i+3}]'
    return f'v[{240+4*(i-16)}:{240+4*(i-16)+3}]'
def vfrag(F):
    if F >= 340:
        k, f = divmod(F - 340, 10); o = 48 + (k * 4 + f % 4) * 4
        return f'a[{o}:{o+3}]'
    b = VRING + 4 * (F % 3)
    return f'v[{b}:{b+3}]'
sROW = 16
sMASK, sNSIG, sNP2, sIK, sP, sNP, sNSK, sK = 22, 23, 24, 25, 26, 27, 28, 29
sP2, sQT, s2P, sP3h = 30, 31, 34, 35
sW, sGEN, sOUT, sOUT3, sT0, sT1, sT2, sT3 = 38, 39, 40, 41, 42, 43, 44, 45
sEXM = 46
sCB, sTR, sH, sRB, sW96, sWP, sT4 = 48, 49, 50, 51, 52, 53, 54
sPF, sPFD = 100, 101

class Op:
    def __init__(s, text, kind='alu', tag=None, need=(), cls=None):
        s.text, s.kind, s.tag, s.need = text, kind, tag, tuple(need)
        if cls is None:
            m = text.split()[0]
            if m.startswith('v_'): cls = 'v'
            elif m.startswith('s_'): cls = 's'
            elif m.startswith('ds_read'): cls = 'r'
            elif m == 'ds_write_b64': cls = 'w8'
            elif m == 'ds_write_b128': cls = 'w16'
            elif m.startswith('buffer_load_dwordx4'): cls = 'l4'
            elif m.startswith('buffer_load') or m.startswith('global_load'): cls = 'l2'
            elif m.startswith('buffer_store'): cls = 'st'
        s.cls = cls; s.notbefore = None
def A(text, need=()): return Op(text, 'alu', None, need)
def DS(text, tag, need=(), fp=None):
    o = Op(text, 'ds', tag, need); o.fp = fp
    return o
def VM(text, tag, need=()): return Op(text, 'vm', tag, need)
class Grp:
    def __init__(s, ops, cls): s.ops, s.cls, s.notbefore = ops, cls, None
class Wait:
    cls = 's'
    def __init__(s, tags): s.tags = tags; s.notbefore = None
class LgAll:
    cls = 's'; notbefore = None
class BarOnly:
    cls = 'bar'; notbefore = None
class Bar: pass
class Stamp:
    def __init__(s, k): s.k = k

class Emit:
    def __init__(s):
        s.L = []; s.vm = []; s.lg = []; s.late = 0; s.nsince = 0; s.lds = None; s.blk = 0
    def raw(s, x): s.L.append(x)
    def e(s, x): s.L.append('    ' + x)
    def wait(s, tags):
        nv = nl = None
        for tag in tags:
            if tag == 'carry':
                nv = s.nsince if nv is None else min(nv, s.nsince)
                continue
            iv = [i for i, t in enumerate(s.vm) if t == tag]
            if iv:
                n = len(s.vm) - 1 - iv[-1]; nv = n if nv is None else min(nv, n)
            il = [i for i, t in enumerate(s.lg) if t == tag]
            if il:
                n = len(s.lg) - 1 - il[-1]; nl = n if nl is None else min(nl, n)
        parts = []
        if nv is not None:
            nv = min(nv, 63); parts.append(f'vmcnt({nv})'); s.vm = s.vm[max(0, len(s.vm) - nv):] if nv else []
        if nl is not None:
            nl = min(nl, 15); parts.append(f'lgkmcnt({nl})'); s.lg = s.lg[len(s.lg) - nl:] if nl else []
        if parts: s.e('s_waitcnt ' + ' '.join(parts))
        return bool(parts)
    def op(s, o):
        if isinstance(o, (list, tuple)):
            for x in o: s.op(x)
        elif isinstance(o, Grp):
            for x in o.ops: s.op(x)
        elif isinstance(o, Wait): s.wait(o.tags)
        elif isinstance(o, LgAll):
            s.e('s_waitcnt lgkmcnt(0)'); s.lg = []
        elif isinstance(o, BarOnly):
            assert not s.lg, s.lg
            s.e('s_barrier')
            if s.lds: s.lds.barrier()
        elif isinstance(o, Bar):
            s.e('s_waitcnt lgkmcnt(0)'); s.lg = []; s.e('s_barrier')
            if s.lds: s.lds.barrier()
        elif isinstance(o, Stamp):
            if STAMP: s.e(f'{"s_memrealtime" if args.rt else "s_memtime"} s[{60+2*o.k}:{61+2*o.k}]')
        else:
            if o.need and s.wait(o.need): s.late += 1
            if 'nost' in EXP and o.cls == 'st': return
            if 'novr' in EXP and o.cls == 'r' and o.tag[0] == 'V' and o.tag[1] > 2: return
            if 'noodd' in EXP and getattr(o, 'odd', False): return
            s.e(o.text)
            if o.kind == 'ds':
                s.lg.append(o.tag)
                if s.lds:
                    for ranges, label, dg in o.fp:
                        s.lds.access('r' if o.cls == 'r' else 'w', ranges, (label, s.blk + dg), f'blk{s.blk}:{len(s.L)}:{o.text}', strict=(s.blk + dg >= 0))
            elif o.kind == 'vm': s.vm.append(o.tag); s.nsince += 1

def pr(r): return f'v[{r}:{r+1}]'
def transform(R, tag):
    ops = [Wait([tag])]
    t1, t2, t3, t4, x = TMP, TMP + 1, TMP + 2, TMP + 3, TMP + 4
    first = True
    for d in range(2):
        D = [R + 2 * r + d for r in range(6)]
        for i, t in enumerate((t1, t2, t3, t4)):
            ops.append(A(f'v_lshlrev_b32 v{t}, 16, v{D[i+1]}', need=[tag] if first else ())); first = False
        for i in range(1, 5): ops.append(A(f'v_and_b32 v{D[i]}, s{sMASK}, v{D[i]}'))
        for (dd, la, lb, ha, hb, k1, k2) in ((D[0], t4, t2, D[4], D[2], sIK, sNSK), (D[5], t1, t3, D[1], D[3], sK, sNSIG)):
            ops.append(A(f'v_lshlrev_b32 v{x}, 16, v{dd}'))
            ops.append(A(f'v_and_b32 v{dd}, s{sMASK}, v{dd}'))
            ops.append(A(f'v_fmac_f32 v{x}, s{k1}, v{la}'))
            ops.append(A(f'v_fmac_f32 v{dd}, s{k1}, v{ha}'))
            ops.append(A(f'v_fmac_f32 v{x}, s{k2}, v{lb}'))
            ops.append(A(f'v_fmac_f32 v{dd}, s{k2}, v{hb}'))
            ops.append(A(f'v_cvt_pk_bf16_f32 v{dd}, v{x}, v{dd}'))
        for (a1, a2, a3, a4, xx) in ((t1, t2, t3, t4, x), (D[1], D[2], D[3], D[4], t2)):
            ops.append(A(f'v_fma_f32 v{xx}, v{a2}, s{sNP2}, v{a4}'))
            ops.append(A(f'v_fmac_f32 v{a4}, -4.0, v{a2}'))
            ops.append(A(f'v_fma_f32 v{a2}, v{a1}, s{sNP2}, v{a3}'))
            ops.append(A(f'v_fmac_f32 v{a3}, -4.0, v{a1}'))
            ops.append(A(f'v_fma_f32 v{a1}, v{a3}, s{sP}, v{a4}'))
            ops.append(A(f'v_fmac_f32 v{a4}, s{sNP}, v{a3}'))
            ops.append(A(f'v_fma_f32 v{a3}, v{a2}, 2.0, v{xx}'))
            ops.append(A(f'v_fmac_f32 v{xx}, -2.0, v{a2}'))
        ops.append(A(f'v_cvt_pk_bf16_f32 v{D[1]}, v{t1}, v{D[1]}'))
        ops.append(A(f'v_cvt_pk_bf16_f32 v{D[4]}, v{t4}, v{D[4]}'))
        ops.append(A(f'v_cvt_pk_bf16_f32 v{D[3]}, v{t3}, v{D[3]}'))
        ops.append(A(f'v_cvt_pk_bf16_f32 v{D[2]}, v{x}, v{t2}'))
    if 'novalu' in EXP: ops = ops[:1] + [A('s_nop 0') for _ in range(9)]
    return ops

def pkfma(d, a, k, c):
    if isinstance(k, str): sr, m = k, 'op_sel_hi:[1,0,1]'
    elif k % 2 == 0: sr, m = f's[{k}:{k+1}]', 'op_sel_hi:[1,0,1]'
    else: sr, m = f's[{k-1}:{k}]', 'op_sel:[0,1,0]'
    return f'v_pk_fma_f32 {pr(d)}, {pr(a)}, {sr}, {pr(c)} {m}'
def transform_pk(R, tag, T):
    ops = [Wait([tag])]
    def fma(d, a, k, c): ops.append(A(pkfma(d, a, k, c)))
    for d in range(2):
        D = [R + 2 * r + d for r in range(6)]
        p = [T + 2 * r for r in range(6)]; x = T + 12
        for r in range(6):
            ops.append(A(f'v_lshlrev_b32 v{p[r]}, 16, v{D[r]}', need=[tag])); ops.append(A(f'v_and_b32 v{p[r]+1}, s{sMASK}, v{D[r]}'))
        fma(p[0], p[4], sIK, p[0]); fma(p[5], p[1], sK, p[5])
        fma(p[0], p[2], sNSK, p[0]); fma(p[5], p[3], sNSIG, p[5])
        fma(x, p[2], sNP2, p[4]); fma(p[4], p[2], '-4.0', p[4]); fma(p[2], p[1], sNP2, p[3]); fma(p[3], p[1], '-4.0', p[3])
        fma(p[1], p[3], sP, p[4]); fma(p[4], p[3], sNP, p[4]); fma(p[3], p[2], '2.0', x); fma(p[2], p[2], '-2.0', x)
        for r in range(6): ops.append(A(f'v_cvt_pk_bf16_f32 v{D[r]}, v{p[r]}, v{p[r]+1}'))
    return ops

def rawset(T): return RAW + 12 * ((T + (T > 30)) % 3)
def xloads(R, c, h, tag):
    ops = [A(f'v_and_b32 v{R+11}, 0x7fff, v{vXW}')]
    for r in range(6):
        ops.append(VM(f'buffer_load_dwordx2 v[{R+2*r}:{R+2*r+1}], v{R+11}, s[4:7], s{sROW+r} offen offset:{h*384+c*64}{args.xpol2 if (c & 1 and r in XR2) else args.xpol}', tag))
    return ops

def vwrites(R, c, h, dg=0, two=False):
    ad = A(f'v_lshrrev_b32 v{TMP+4}, 15, v{vXW}')
    w = {}
    for pos in range(6):
        r = R + 2 * SLOT[pos]
        w[pos] = DS(f'ds_write_b64 v{R + 2 * SLOT[1] if (two and pos != 1) else TMP+4}, v[{r}:{r+1}] offset:{unit(pos,c)*UNIT+(48-16*h)*16}', 'w',
                    fp=[([(unit(pos,c)*UNIT+rowpos(p)*16, unit(pos,c)*UNIT+rowpos(p)*16+256) for p in (h, h+4)], ('V', pos, c), dg)])
    return ad, w

def halo_loads(R, tag):
    a, b, c_ = R + 11, R + 10, R + 9
    ops = [A(f'v_and_b32 v{a}, 0xf0, v{vU}'),
           A(f'v_lshrrev_b32 v{a}, 1, v{a}'),
           A(f'v_add_u32 v{a}, s{sW96}, v{a}'),
           A(f'v_mov_b32 v{b}, s{sT4}'),
           A(f'v_mov_b32 v{c_}, s{sT4+1}'),
           A(f'v_cndmask_b32 v{b}, v{b}, v{c_}, s[56:57]'),
           A(f'v_add_u32 v{a}, v{a}, v{b}')]
    for r in range(6):
        ops += [A(f's_sub_u32 s{sT3}, s{sROW+r}, s{sH}'),
                VM(f'buffer_load_dwordx2 v[{R+2*r}:{R+2*r+1}], v{a}, s[4:7], s{sT3} offen', tag)]
    return ops

def halo_writes(R, dg=0, direct=False):
    a, b, c_ = TMP + 4, TMP, TMP + 1
    ops = [A(f'v_and_b32 v{b}, 0xf0, v{vU}'),
           A(f'v_lshrrev_b32 v{b}, 1, v{b}'),
           A(f'v_add_u32 v{b}, s{sW96}, v{b}'),
           A(f'v_and_b32 v{a}, 8, v{b}'),
           A(f'v_lshrrev_b32 v{c_}, 6, v{b}'),
           A(f'v_mul_u32_u24 v{c_}, 192, v{c_}')] + ([A(f'v_cmp_eq_u32 s[92:93], 0, v{c_}')] if direct else []) + [
           A(f'v_add_u32 v{a}, v{a}, v{c_}'),
           A(f'v_bfe_u32 v{c_}, v{b}, 4, 2'),
           A(f'v_mul_u32_u24 v{c_}, {PLS}, v{c_}'),
           A(f'v_add_u32 v{a}, v{a}, v{c_}'),
           A(f'v_and_b32 v{c_}, 32, v{b}'),
           A(f'v_lshl_add_u32 v{a}, v{c_}, 1, v{a}'),
           A(f'v_bfe_u32 v{c_}, v{vU}, 8, 1'),
           A(f'v_lshl_add_u32 v{a}, v{c_}, 4, v{a}'),
           A(f'v_mov_b32 v{c_}, {DUMMY-HOFF}'),
           A(f'v_cndmask_b32 v{a}, v{c_}, v{a}, s[58:59]')]
    for pos in range(6):
        r = R + 2 * SLOT[pos]
        ops.append(DS(f'ds_write_b64 v{a}, v[{r}:{r+1}] offset:{HOFF+32*pos}', 'w',
                      fp=[([(HOFF+c*192+32*pos, HOFF+c*192+32*pos+32) for c in range(6)], 'H', dg)]))
    if direct:
        ops.append(A('s_and_b64 exec, s[92:93], s[58:59]'))
        for pos in range(6):
            r = R + 2 * SLOT[pos]; o = unit(pos, 0) * UNIT + 1024
            ops.append(DS(f'ds_write_b64 v{a}, v[{r}:{r+1}] offset:{o}', 'w', fp=[([(o, o + 32)], ('V', pos, 0), dg)]))
        ops.append(A('s_mov_b64 exec, -1'))
    return ops

def halo_copy(c, R, dg=0):
    lit = sum(unit(pos, c) << (5 * pos) for pos in range(6))
    a, b = R + 4, R + 5
    return [DS(f'ds_read_b128 v[{R}:{R+3}], v{vR} offset:{HOFF+c*192}', 'hc', fp=[([(HOFF+c*192, HOFF+c*192+192)], 'H', dg)]),
            A(f's_mov_b32 s{sT3}, {lit}'),
            A(f'v_bfe_u32 v{a}, v{vU}, 5, 3'),
            A(f'v_mul_u32_u24 v{b}, 5, v{a}'),
            A(f'v_bfe_u32 v{b}, s{sT3}, v{b}, 5'),
            A(f'v_mul_u32_u24 v{b}, 65, v{b}'),
            A(f'v_sub_u32 v{b}, v{b}, v{a}'),
            A(f'v_lshl_add_u32 v{a}, v{b}, 5, v{vR}'),
            Wait(['hc']),
            Grp([A(f's_mov_b64 exec, s[{sEXM}:{sEXM+1}]'),
                 DS(f'ds_write_b128 v{a}, v[{R}:{R+3}] offset:1024', 'w', need=['hc'],
                    fp=[([(unit(pos,c)*UNIT+1024, unit(pos,c)*UNIT+1056)], ('V', pos, c), dg) for pos in range(6)]),
                 A('s_mov_b64 exec, -1')], 'w16')]

def prefetch(reg, g, k, kind='n'):
    sr = sPF
    return [A(f'v_and_b32 v{reg}, 0x1f0, v{vU}'), A(f'v_mul_u32_u24 v{reg}, 96, v{reg}'),
            VM(f'buffer_load_dword v{reg}, v{reg}, s[4:7], s{sr} offen offset:{k*384+g*128}', 'pf')]

def stage_addr(a128, a64, t):
    return [A(f'v_bfe_u32 v{t}, v{vU}, 6, 2'),
            A(f'v_mul_u32_u24 v{a128}, {PLS}, v{t}'),
            A(f'v_and_b32 v{t}, 0x80, v{vU}'),
            A(f'v_lshrrev_b32 v{t}, 1, v{t}'),
            A(f'v_add_u32 v{a128}, v{a128}, v{t}'),
            A(f'v_and_b32 v{t}, 0x40, v{vU}'),
            A(f'v_lshrrev_b32 v{t}, 2, v{t}'),
            A(f'v_add_u32 v{a128}, v{a128}, v{t}'),
            A(f'v_bfe_u32 v{t}, v{vU}, 4, 2'),
            A(f'v_mul_u32_u24 v{t}, 3104, v{t}'),
            A(f'v_add_u32 v{a128}, v{a128}, v{t}'),
            A(f'v_add_u32 v{a128}, s{sW96}, v{a128}'),
            A(f'v_lshrrev_b32 v{t}, 8, v{vU}'),
            A(f'v_lshl_add_u32 v{a64}, v{t}, 3, v{a128}'),
            A(f'v_lshl_add_u32 v{a128}, v{t}, 4, v{a128}')]

def stage_write(a128, a64, u0, j, q4, q2, lab):
    fp = [([(u0*UNIT+g8*3104+j*384, u0*UNIT+g8*3104+j*384+384) for g8 in range(4)], lab[0], lab[1])]
    w = [DS(f'ds_write_b128 v{a128}, {q4} offset:{u0*UNIT+j*384}', 'w', fp=fp),
         DS(f'ds_write_b64 v{a64}, {q2} offset:{u0*UNIT+j*384+64}', 'w', fp=fp)]
    for x in w: x.flo = True
    return w

def cvt_stage(S, a128, a64, u0, lab, js=range(8), nb=None, after0=(), q2last=False):
    ops = []
    for j in js:
        b = S + 12 * j
        w = stage_write(TMP if (after0 and j == 0) else a128, TMP + 1 if (after0 and j == 0) else a64, u0, j, f'v[{b}:{b+3}]', f'v[{b+8}:{b+9}]', lab)
        o = [A(f'v_cvt_pk_bf16_f32 v{b+8+k}, v{b+8+2*k}, v{b+8+2*k+1}') for k in range(2)] + [w[1]]
        o += [A(f'v_cvt_pk_bf16_f32 v{b+k}, v{b+2*k}, v{b+2*k+1}') for k in range(4)] + [w[0]]
        if nb is not None: o[0].notbefore = nb(j)
        if q2last:
            if nb is not None: o[3].notbefore = nb(j) - 6
            o = o[3:] + o[:3]
        ops += o
        if j == 0: ops += list(after0)
    return ops

def rb_read(areg, u0, buf, g8, k, lab):
    o = u0 * UNIT + g8 * 3104 + k * 1024
    return DS(f'ds_read_b128 {buf}, v{areg} offset:{o}', (lab[0], g8, k), fp=[([(o, o + 1024)], lab[0], lab[1])])
SPOL = dict(zip(('Y2', 'Y1', 'Y0', 'Y3', 'T'), [{'s': ' sc1', 'n': ' nt', 'p': '', 'b': ' sc1 nt'}[c] for c in args.spols]))
def rb_store(buf, sbase, rowoff, g8, k, lab):
    return [A(f's_add_u32 s{sT2}, s{sbase}, {rowoff+g8*3072+k*1024}'),
            VM(f'buffer_store_dwordx4 {buf}, v{vU}, s[12:15], s{sT2} offen{SPOL[lab[0]]}', 'st', need=[(lab[0], g8, k)])]

def uload(t, s, q):
    t %= 36
    return VM(f'buffer_load_dwordx4 {ufrag(t,s,q)}, v{vU}, s[8:11], s{sT0} offen offset:{q*1024}{args.upol}', ('U', t, s))
sUW = 36
def usoff(t, s):
    if t >= 36: return A(f's_add_u32 s{sT0}, s{sUW}, {(t%36)*36864+s*3072}')
    if 24 <= t < 30: t = 24 + sub(t)[1]
    return A(f's_mov_b32 s{sT0}, {t*36864+s*3072}')

def vread(F):
    dg = F // 360; F %= 360
    t, f = divmod(F, 10)
    pos, c = sub(t)
    e = 65 if f == 0 else (49 if f == 9 else rowpos(f - 1))
    return DS(f'ds_read_b128 {vfrag(F)}, v{vR} offset:{unit(pos,c)*UNIT+e*16}', ('V', F),
              fp=[([(unit(pos,c)*UNIT+e*16, unit(pos,c)*UNIT+e*16+256)], ('V', pos, c), dg)])

def rows_setup():
    o = [A(f's_mul_i32 s{sT1}, s{sTR}, {4*ROWB}') if 'xsame' not in EXP else A(f's_mov_b32 s{sT1}, {4*ROWB}'),
         A(f's_add_u32 s{sT1}, s{sT1}, s{sWP}'),
         Grp([A(f's_cmp_ge_u32 s{sTR}, 128'), A(f's_cselect_b32 s{sT1}, {OOB}, s{sT1}')], 'r'),
         A(f's_sub_u32 s{sROW}, s{sT1}, {ROWB}'),
         Grp([A(f's_cmp_eq_u32 s{sTR}, 0'), A(f's_cselect_b32 s{sROW}, {OOB}, s{sROW}')], 'r'),
         A(f's_mov_b32 s{sROW+1}, s{sT1}')]
    for r in range(2, 6): o.append(A(f's_add_u32 s{sROW+r}, s{sT1}, {(r-1)*ROWB}'))
    o.append(A(f's_add_u32 s{sPF}, s{sT1}, s{sPFD}'))
    return o

EARLYT = set()
PL0 = [int(c) for c in args.pl0]; PL1 = [int(c) for c in args.pl1]
OA, OB = RAW + 2, RAW + 28
def early_ab(tiles, nb):
    ops = []
    T1, T2, T3 = RAW + 12, RAW + 16, RAW + 20
    for (j, q) in tiles:
        o = (j * 3 + q) * 4
        l = [A(f'v_accvgpr_read_b32 v{T1+r}, a{o+r}') for r in range(4)] + [A(f'v_accvgpr_read_b32 v{T2+r}, a{96+o+r}') for r in range(4)]
        l[4].notbefore = nb(j, q)
        l += [A(f'v_add_f32 v{T3+r}, v{T1+r}, v{T2+r}') for r in range(4)] + [A(f'v_sub_f32 v{T1+r}, v{T1+r}, v{T2+r}') for r in range(4)]
        l += [A(f'v_accvgpr_write_b32 a{o+r}, v{T3+r}') for r in range(4)] + [A(f'v_accvgpr_write_b32 a{96+o+r}, v{T1+r}') for r in range(4)]
        ops += l; EARLYT.add((j, q))
    return ops
def even_plain(j, T1, T2, O, nb=None):
    ops = []
    for q in range(3):
        o = (j * 3 + q) * 4
        l = [A(f'v_accvgpr_read_b32 v{T1+r}, a{o+r}') for r in range(4)]
        if (j, q) not in EARLYT:
            l += [A(f'v_accvgpr_read_b32 v{T2+r}, a{96+o+r}') for r in range(4)] + [A(f'v_add_f32 v{T1+r}, v{T1+r}, v{T2+r}') for r in range(4)]
        m = [A(f'v_add_f32 v{T2+r}, v{S3+o+r}, v{S4+o+r}') for r in range(4)]
        if nb: m[0].notbefore = nb(j, q)
        m += [A(f'v_sub_f32 v{S4+o+r}, v{S3+o+r}, v{S4+o+r}') for r in range(4)]
        m += [A(f'v_fma_f32 v{S3+o+r}, v{T2+r}, s{sQT}, v{T1+r}') for r in range(4)]
        m[-1].mark = ('y0', j, q)
        m += [A(f'v_fmac_f32 v{T2+r}, s{sP2}, v{T1+r}') for r in range(4)]
        m += [A(f'v_cvt_pk_bf16_f32 v{O+2*q+h}, v{T2+2*h}, v{T2+2*h+1}') for h in (0, 1)]
        ops += l + m
    return ops
def burst(E):
    a128, a64 = TMP, TMP + 1
    for i in range(args.idle2): E.e('s_sleep 37')
    js = [j for j in range(8) if j not in PL0 and j not in PL1]
    if js[0] >= 6: E.e('s_nop 7')
    E.raw('.p2align 3')
    neg = 'neg_lo:[0,1] neg_hi:[0,1]'
    pend = []
    for j in PL0:
        w = stage_write(a128, a64, 0, j, f'v[{OA}:{OA+3}]', f'v[{OA+4}:{OA+5}]', ('Y2', 0))
        E.op(w[0]); pend.append(w[1])
    for n, j in enumerate(js):
        O1 = (OB, OA)[n & 1]
        for q in range(3):
            o = (j * 3 + q) * 4
            T1, T2 = RAW + 12 + (q & 1) * 8, RAW + 12 + (q & 1) * 8 + 4
            for r in range(4): E.e(f'v_accvgpr_read_b32 v{T1+r}, a{o+r}')
            if (j, q) not in EARLYT:
                for r in range(4): E.e(f'v_accvgpr_read_b32 v{T2+r}, a{96+o+r}')
                for h in (0, 2): E.e(f'v_pk_add_f32 {pr(T1+h)}, {pr(T1+h)}, {pr(T2+h)}')
            for h in (0, 2): E.e(f'v_pk_add_f32 {pr(T2+h)}, {pr(S3+o+h)}, {pr(S4+o+h)}')
            for h in (0, 2): E.e(f'v_pk_add_f32 {pr(S4+o+h)}, {pr(S3+o+h)}, {pr(S4+o+h)} {neg}')
            for h in (0, 2): E.e(pkfma(S3 + o + h, T2 + h, sQT, T1 + h))
            for h in (0, 2): E.e(pkfma(T1 + h, T1 + h, sP2, T2 + h))
            for h in (0, 1): E.e(f'v_cvt_pk_bf16_f32 v{O1+2*q+h}, v{T1+2*h}, v{T1+2*h+1}')
            w = stage_write(a128, a64, 0, j, f'v[{O1}:{O1+3}]', f'v[{O1+4}:{O1+5}]', ('Y2', 0))
            if q == 0 and pend: E.op(pend.pop())
            if q == 1: E.op(w[0])
            if q == 2: pend.append(w[1])
    E.op(pend); E.op(Bar())

def odd_part(a128, a64, npark, g_ok, order):
    ops = []
    T1, T2 = RAW + 12, RAW + 16; wr = {}
    for n, j in enumerate(order):
        O1 = RAW + ((n + 1) & 1) * 6
        for q in range(3):
            o = (j * 3 + q) * 4
            if (j, q) in EARLYT:
                for r in range(4): ops.append(A(f'v_accvgpr_read_b32 v{T1+r}, a{96+o+r}'))
            else:
                for r in range(4): ops.append(A(f'v_accvgpr_read_b32 v{T1+r}, a{o+r}'))
                for r in range(4): ops.append(A(f'v_accvgpr_read_b32 v{T2+r}, a{96+o+r}'))
                for r in range(4): ops.append(A(f'v_sub_f32 v{T1+r}, v{T1+r}, v{T2+r}'))
            for r in range(4): ops.append(A(f'v_fma_f32 v{T2+r}, v{T1+r}, s{s2P}, v{S4+o+r} div:2'))
            for r in range(4): ops.append(A(f'v_fma_f32 v{S4+o+r}, v{T1+r}, s{sP3h}, v{S4+o+r} mul:2'))
            for h in (0, 1): ops.append(A(f'v_cvt_pk_bf16_f32 v{O1+2*q+h}, v{T2+2*h}, v{T2+2*h+1}'))
            ops[-2].after = wr.get(n - 2, [])
            ops[-1].mark = ('odd', j, q)
            if n < npark:
                for h in (0, 1): ops.append(A(f'v_accvgpr_write_b32 a{12*j+2*q+h}, v{O1+2*q+h}'))
            else:
                w = stage_write(a128, a64, 0, j, f'v[{O1}:{O1+3}]', f'v[{O1+4}:{O1+5}]', ('Y1', 0))
                for x in w: x.notbefore = g_ok
                if q: ops.append(w[q - 1]); wr.setdefault(n, []).append(w[q - 1])
            if n < npark: ops[-1].mark = ('park', j, q)
    for o in ops:
        if o.cls == 'v': o.odd = True
    return ops

def morder():
    L = []
    if args.ord == 'v':
        for f in range(10):
            L += [(f - s, s, q) for s in range(3) if 0 <= f - s <= 7 for q in range(3)]
    else:
        for j in range(8):
            if j == 0 or (j == 7 and args.ord == 'c2'): L += [(j, s, q) for s in range(2) for q in range(3)]
            else: L += [(j, 0, 0), (j, 1, 0), (j, 1, 1), (j, 0, 1), (j, 0, 2), (j, 1, 2)]
            if j: L += [(j - 1, 2, q) for q in range(3)]
        L += [(7, 2, q) for q in range(3)]
    assert len(L) == 72 and len(set(L)) == 72
    return L
MO = morder()
VF = [min(m for m, (j, s, q) in enumerate(MO) if j + s == f) for f in range(10)]
VL = [max(m for m, (j, s, q) in enumerate(MO) if j + s == f) for f in range(10)]
UF = {(s, q): min(m for m, x in enumerate(MO) if x[1:] == (s, q)) for s in range(3) for q in range(3)}
UL = {(s, q): max(m for m, x in enumerate(MO) if x[1:] == (s, q)) for s in range(3) for q in range(3)}
AF = {(j, q): min(m for m, x in enumerate(MO) if (x[0], x[2]) == (j, q)) for j in range(8) for q in range(3)}
AL = {(j, q): max(m for m, x in enumerate(MO) if (x[0], x[2]) == (j, q)) for j in range(8) for q in range(3)}
MX = []
for j in range(8):
    for q in range(3):
        ks = [(k, s_) for k in range(2) for s_ in range(3)]
        MX += [(j, q, k, s_) for (k, s_) in (ks[::-1] if q == 1 else ks)]
if args.skew:
    MX = [x for x in MX[:36] if x[2] == 0] + [x for x in MX[:36] if x[2] == 1] + MX[36:]
XUF = {(k, s_): min(m for m, x in enumerate(MX) if x[2:] == (k, s_)) for k in range(2) for s_ in range(3)}
XAL = {j: max(m for m, x in enumerate(MX) if x[0] == j) for j in range(8)}
XVF = {(k, f): min(m for m, x in enumerate(MX) if (x[2], x[0] + x[3]) == (k, f)) for k in range(2) for f in range(10)}
XVL = {(k, f): max(m for m, x in enumerate(MX) if (x[2], x[0] + x[3]) == (k, f)) for k in range(2) for f in range(10)}
def mfma_list(t):
    pos, c = sub(t)
    L = []
    if t >= 34:
        for (j, q, k, s) in MX[72 * (t - 34):72 * (t - 33)]:
            d = acc(5, j, q); F = 340 + 10 * k + j + s
            L.append(Op(f'v_mfma_f32_16x16x32_bf16 {d}, {ufrag(34+k,s,q)}, {vfrag(F)}, {d}', 'mfma', None, [('U', 34 + k, s), ('V', F)]))
        return L
    for m, (j, s, q) in enumerate(MO):
        d = acc(pos, j, q)
        cc = '0' if (t < 4 and AF[(j, q)] == m) else d
        L.append(Op(f'v_mfma_f32_16x16x32_bf16 {d}, {ufrag(t,s,q)}, {vfrag(10*t+j+s)}, {cc}', 'mfma', None,
                    [('U', t, s), ('V', 10 * t + j + s)]))
    return L

BARS = [0, 3, 7, 11, 15, 16, 19, 23] + ([24] if args.pl1 else []) + [25, 26, 28, 29, 30, 33, 34, 35]
B35G = args.b35; B34G = args.b34
NJ35 = args.nj35; NS35 = args.ns35
B0G = args.b0g
AY, AY2, AYR = S3 + 4, S3 + 5, S3 + 6
UG = [int(x) for x in (args.ug or {'v': '57,60,65,69,73,77,81,85,88', 'c2': '60,64,67,72,76,80,84,88,92', 'c2f': '65,67,70,73,76,80,84,87,90'}[args.ord]).split(',')]
XG0 = args.xg
CAP = {None: 2, 'l0': 0, 's': 2, 'r': 1, 'l4': 0, 'l2': 0, 'w8': 0, 'w16': 0, 'st': 2, 'bar': 0}
RES = {'l4': ('vm', 3), 'l2': ('vm', args.xsp), 'st': ('vm', 3), 'w8': ('wr', 2), 'w16': ('wr', 4)}
PEN = {'w8': 4, 'w16': 12, 'st': 12, 'bar': 8}
N = 36 * 72
STG = set(int(x) for x in args.stg.split(',') if x)

class Sched:
    def __init__(s):
        s.head = [None] * N; s.body = [[] for _ in range(N)]
        s.busy = {'vm': [False] * N, 'wr': [False] * N}
        s.resv = True; s.xsub = set(); s.nolds = [False] * N; s.marks = {}
    def tight(s, G):
        t, g = divmod(G, 72)
        if args.uearly and ((t == 35 and g >= 48) or (t == 0 and g <= 20)): return False
        if not args.uearly and ((t == 33 and g >= 59) or (t == 34 and g <= 20)): return False
        return t in s.xsub or t == 33
    def cap(s, g): return CAP[s.head[g].cls if s.head[g] is not None else None]
    def fix(s, g, o):
        g %= N
        assert s.head[g] is None, (g // 72, g % 72, o.cls, s.head[g].cls)
        s.head[g] = o
        if o.cls in RES:
            r, k = RES[o.cls]
            for i in range(k): s.busy[r][(g + i) % N] = True
    def try_place(s, ops, g0, g1, rho, phi, relax=0):
        plan = []; g = g0; n = len(ops)
        hd = {}; bd = {}; bz = set(); pos = {}
        def extra(g): return int((g + 1) * phi) - int(g * phi)
        own_body_at = -1
        for k, o in enumerate(ops):
            g = max(g, g0 + int(rho * k * (g1 - g0) / n))
            for x in getattr(o, 'after', ()): g = max(g, pos[id(x)])
            gsave = g
            if o.notbefore is not None: g = max(g, o.notbefore)
            while True:
                if g > g1: return None
                G = g % N
                h = s.head[G] if s.head[G] is not None else hd.get(G)
                nb = len(s.body[G]) + bd.get(G, 0)
                capn = CAP[h.cls if h is not None else None] + extra(g)
                if o.cls != 'v' and h is None and own_body_at < g and nb <= CAP[o.cls] + extra(g):
                    ok = not (s.resv and o.cls != 'st' and (G % 72) in STG and s.tight(G))
                    if o.cls in ('r', 'w8', 'w16', 'st') and s.nolds[G]: ok = False
                    if o.cls == 'st' and STG and s.tight(G):
                        ok = (G % 72) in STG; r, kk = 'vm', 1
                    elif ok and o.cls in RES:
                        r, kk = RES[o.cls]; kk = max(1, kk - relax)
                        ok = not any(s.busy[r][(g + i) % N] or (r, (g + i) % N) in bz for i in range(kk))
                    if ok:
                        hd[G] = o; plan.append((g, 'h', o))
                        if o.cls in RES:
                            for i in range(kk): bz.add((r, (g + i) % N))
                        break
                if o.cls in ('v', 's') and nb < capn:
                    bd[G] = bd.get(G, 0) + 1; plan.append((g, 'b', o)); own_body_at = g
                    break
                g += 1
            pos[id(o)] = g
            if getattr(o, 'flo', False): g = gsave
        return plan
    def place(s, ops, g0, g1, spread=True):
        tries = [(r / 10, 0.0) for r in range(10 if spread else 0, -1, -1)] + [(0.0, p / 20) for p in range(1, 61)]
        tries = [(r, p, x) for x in (0, 1, 2) for (r, p) in tries]
        for rho, phi, relax in tries:
            plan = s.try_place(ops, g0, g1, rho, phi, relax)
            if plan is not None:
                if relax or phi: print(f'  stream {g0//72}:{g0%72}..{g1//72}:{g1%72} relax {relax} overflow {phi}')
                break
        else: raise Exception(f'cannot place stream in {g0//72}:{g0%72}..{g1//72}:{g1%72}')
        return s.commit(plan)
    def commit(s, plan):
        for g, k, o in plan:
            if k == 'h': s.fix(g, o)
            else: s.body[g % N].append(o)
            if hasattr(o, 'mark'): s.marks[o.mark] = g
            o.at = g
        return max(p[0] for p in plan)
    def alap_heads(s, ops, g1, g0):
        g = g1
        for o in ops[::-1]:
            r, k = RES[o.cls]
            while True:
                assert g >= g0, 'alap'
                G = g % N
                if s.head[G] is None and len(s.body[G]) == 0 and not any(s.busy[r][(g + i) % N] for i in range(k)): break
                g -= 1
            s.fix(g, o); o.at = g; g -= 1
    def late_wait(s, w, lo, hi):
        for g in range(hi, lo - 1, -1):
            if s.head[g % N] is None:
                s.fix(g, w); return
            if isinstance(s.head[g % N], Wait):
                s.head[g % N] = Wait(list(s.head[g % N].tags) + list(w.tags)); return
        s.body[hi % N].append(w)
    def cycles(s, t):
        c = 0
        for g in range(72 * t, 72 * t + 72):
            h = s.head[g]
            c += 16 + (PEN.get(h.cls, 0) if h is not None else 0) + 4 * max(0, len(s.body[g]) - s.cap(g))
        return c

def build_body():
    S = Sched()
    vissue = {}
    for t in range(36):
        b = 72 * t
        if t in BARS:
            gb = {0: B0G, 34: B34G, 35: B35G}.get(t, 62)
            S.fix(b + gb - 1, Grp([Stamp(1 + BARS.index(t)), LgAll()], 's')); S.fix(b + gb, BarOnly())
        for f in range(10):
            if 10 * t + f + 3 >= 340: continue
            gend = VL[f]
            if f == 7: gend = max(gend, 63)
            assert gend not in (61, 62)
            S.fix(b + gend, vread(10 * t + f + 3)); vissue[(10 * t + f + 3) % 360] = b + gend
    def uburst(b, gaps, tu, lo0):
        for i in range(9): S.fix(b + gaps[i], uload(tu, i // 3, i % 3))
        for i in (0, 3, 6):
            lo = gaps[i - 1] if i else lo0
            g = next(g for g in range(max(lo + 1, gaps[i] - 4), gaps[i]) if S.head[(b + g) % N] is None)
            S.fix(b + g, usoff(tu, i // 3))
    for i in range(9): assert UG[i] >= UL[(i // 3, i % 3)]
    XG = [int(x) for x in args.xug.split(',')]
    for t in range(36):
        if t == (35 if args.uearly else 33): continue
        uburst(72 * t, UG, t + 2 + (t >= 33 and args.uearly), XG[8] if t == 33 else UG[8] - 72)
    uburst(72 * 33, XG, 35, UG[8] - 72)
    def vplace(F, g0, g1):
        g = next(g for g in range(g0, g1 + 1) if S.head[g % N] is None)
        S.fix(g, vread(F)); vissue[F % 360] = g; return g
    g = 72 * 33 + 20
    for f in range(4):
        for k in range(2): g = vplace(340 + 10 * k + f, g + 4, 72 * 33 + 66)
    for f in range(4, 10):
        for k in range(2): vplace(340 + 10 * k + f, 72 * 34 + XVL[(k, f - 4)], 72 * 34 + XVF[(k, f)] - 8)
    g = 72 * 35 + B35G
    for F in (360, 361, 362): g = vplace(F, g + 1, 72 * 35 + 68)
    for t in range(34):
        b = 72 * t
        for s_ in range(3):
            m = min(UF[(s_, q)] for q in range(3))
            S.late_wait(Wait([('U', t, s_)] + (['carry'] if t == 1 else [])), b + m - 3, b + m - 1)
        for f in range(10):
            F = 10 * t + f; hi = b + VF[f] - 1
            iss = vissue[F]
            if iss > hi: iss -= N
            S.late_wait(Wait([('V', F)]), max(iss + 4, hi - 6), hi)
    b = 72 * 34
    for k in range(2):
        for s_ in range(3): S.late_wait(Wait([('U', 34 + k, s_)]), b + XUF[(k, s_)] - 3, b + XUF[(k, s_)] - 1)
        for f in range(10):
            hi = b + XVF[(k, f)] - 1
            S.late_wait(Wait([('V', 340 + 10 * k + f)]), max(vissue[340 + 10 * k + f] + 4, hi - 6), hi)
    wins = [(T, T // 4 + 1, T % 4) for T in range(20)] + [(31 + h, 0, h) for h in range(4)]
    if 'noprod' in EXP: wins = []
    S.xsub = set((T - 2) % 36 for (T, c, h) in wins)
    PF = {}
    for spec in args.pf.split(','):
        if spec: PF.setdefault(int(spec[:-3]), []).append(lambda r, spec=spec: prefetch(r, int(spec[-2]), int(spec[-1]), spec[-3]))
    for (T, c, h) in wins:
        R = rawset(T); t = (T - 2) % 36
        ops = xloads(R, c, h, ('x', T))
        for i, f in enumerate(PF.pop(t, [])): ops = f(R + 10 - i) + ops
        late = args.xg2 and (t >= 29 or t <= args.xl2)
        if late: RES['l2'] = ('vm', args.xsp2)
        gx = S.place(ops, 72 * t + (args.xg2 - 1 if late else XG0 - 4), 72 * t + 59, spread=False)
        RES['l2'] = ('vm', args.xsp)
        if T == 19: g19 = gx
    if not wins: g19 = 72 * 17 + 50
    S.place([A(f's_add_u32 s{sTR}, s{sTR}, 8'), Grp([A(f's_cmp_eq_u32 s{sGEN}, 1'), A(f's_cselect_b32 s{sTR}, 128, s{sTR}'), A(f's_cselect_b32 s{sUW}, {OOB}, 0')], 'l0')] + rows_setup(),
            g19 + 1, 72 * 18 + XG0 - 5)
    HR = RAW + 24
    ops = halo_loads(HR, ('x', 20))
    for i, f in enumerate(PF.pop(18, [])): ops = f(HR + 8 - i) + ops
    S.place(ops, 72 * 18 + XG0 - 4, 72 * 18 + 59, spread=False)
    for t, fs in PF.items():
        assert len(fs) == 1 and 19 <= t <= 23
        S.place(fs[0](RAW + (t & 1) if t < 23 else TMP + 4), 72 * t + XG0 - 4, 72 * t + 56, spread=False)
    a128, a64, arb = TMP, TMP + 1, TMP + 2
    aq = lambda r: f'a[{r}:{r+3}]'
    vq = lambda r: f'v[{r}:{r+3}]'
    G = lambda x: int(round(72 * x))
    gk = [(g8, k) for g8 in range(4) for k in range(3)]
    kg = [(g8, k) for k in range(3) for g8 in range(4)]
    SP = [float(x) for x in args.stp.split(',')]
    def stores(chunks, bufs, reads, sbase, rowoff, lab, g0, g1):
        ops = []
        for (g8, k), buf, rd in zip(chunks, bufs, reads):
            st = rb_store(buf, sbase, rowoff, g8, k, lab); st[1].notbefore = rd.at + 6
            ops += [st[0], Wait([(lab[0], g8, k)]), st[1]]; ops[-2].notbefore = rd.at + 5
        S.place(ops, g0, g1); return [o for o in ops if isinstance(o, Op) and o.cls == 'st']
    lab = ('Y2', 0)
    b2 = [vq(RAW + 20 + 4 * n) for n in range(4)] + [vq(RAW + 20), vq(RAW + 24)] + [aq(x) for x in (84, 88, 92, 96, 100, 104)]
    if not PL1: b2[6:] = [aq(96 + 4 * n) for n in range(6)]
    r2 = [rb_read(arb, 0, b2[n], *kg[n], lab) for n in range(12)]
    S.place(r2[:4], G(24), G(24) + 14, spread=False)
    d2 = (SP[1] - SP[0]) / 3
    s2 = stores(kg[:4], b2[:4], r2[:4], sOUT, 2 * ROWB, lab, G(SP[0]), G(SP[0] + d2))
    S.place(r2[4:6], s2[1].at + 2, s2[1].at + 20, spread=False)
    S.place(r2[6:], G(25) + 20, G(25) + 59)
    stores(kg[4:], b2[4:], r2[4:], sOUT, 2 * ROWB, lab, G(SP[0] + d2) + 1, G(SP[1]))
    lab = ('Y1', 0)
    pk = []
    for j in range(args.npark): pk += stage_write(a128, a64, 0, j, f'a[{12*j}:{12*j+3}]', f'a[{12*j+4}:{12*j+5}]', lab)
    S.place(pk, G(25) + 64, G(26) + 30)
    b1 = [aq((108 if PL1 else 120) + 4 * n) for n in range(12)]
    r1 = [rb_read(arb if n < 8 else AYR, 0, b1[n], *kg[n], lab) for n in range(12)]
    S.place(r1[:4], G(26) + 64, G(27) + 30); S.place(r1[4:8], G(28) + 64, G(29) + 20); S.place(r1[8:], G(29) + 64, G(30) + 30)
    stores(kg, b1, r1, sOUT, 1 * ROWB, lab, G(SP[1]) + 1, G(SP[2]))
    lab = ('Y0', 0)
    cs = cvt_stage(S3, AY, AY2, Y0U, lab, nb=lambda j: G(29) + max(AL[(j, q)] for q in range(3)) + 6,
                   after0=[A(f'v_mov_b32 v{AY}, v{a128}'), A(f'v_mov_b32 v{AY2}, v{a64}'), A(f'v_mov_b32 v{AYR}, v{arb}')])
    S.place(cs, G(29) + 20, G(30) + 59, spread=False)
    b0 = [aq(4 * n) for n in range(12)]
    r0 = [rb_read(AYR, Y0U, b0[n], *gk[n], lab) for n in range(12)]
    S.place(r0, G(30) + 64, G(33) + 18)
    stores(gk, b0, r0, sOUT, 0, lab, G(SP[2]) + 1, G(SP[3]))
    nb3 = lambda j: G(34) + XAL[j] + (8 if j > 1 or not args.skew else 11)
    lab = ('Y3', 0)
    S.place(cvt_stage(S4, AY, AY2, Y3U, lab, js=range(3), nb=nb3, q2last=True), G(34) + 10, G(34) + B34G - 2, spread=False)
    S.place(cvt_stage(S4, AY, AY2, Y3U, lab, js=range(3, 6), nb=nb3, q2last=True), G(34) + B34G + 1, G(35) + B35G - 2, spread=False)
    S.place(cvt_stage(S4, AY, AY2, Y3U, lab, js=range(6, NJ35), nb=nb3, q2last=True), G(35) + B35G + 1, G(35) + 71, spread=False)
    b3 = [vq(S4 + 4 * n) for n in range(12)]
    r3 = [rb_read(AYR, Y3U, b3[n], *kg[n], lab) for n in range(8)]
    S.place(r3[:4], G(34) + B34G + 1, G(35) + 20, spread=False)
    S.place(r3[4:], G(35) + B35G + 1, G(35) + 70, spread=False)
    stores(kg[:NS35], b3[:NS35], r3[:NS35], sOUT, 3 * ROWB, lab, G(SP[3]) + 1, G(35) + 71)
    lab = ('Y3', -1)
    ops = []
    for n in range(NS35, 8): ops += rb_store(b3[n], sOUT3, 0, *kg[n], lab)
    g = S.place(ops, 0, 21, spread=False) if ops else 0
    S.place(cvt_stage(S4, AY, AY2, Y3U, lab, js=range(NJ35, 8), nb=lambda j: 7, q2last=True), 0, B0G - 2, spread=False)
    r3 = [rb_read(AYR, Y3U, b3[n], *kg[n], lab) for n in range(8, 12)]
    S.place(r3, B0G + 1, 60)
    stores(kg[8:], b3[8:], r3, sOUT3, 0, lab, max(g + 1, B0G + 6), G(args.y3end))
    S.resv = False
    S.place(stage_addr(a128, a64, TMP + 3) + [A(f'v_add_u32 v{arb}, s{sRB}, v{vU}')], G(21) + 2, G(21) + 20, spread=False)
    et = [(j, q) for j in PL0 + [x for x in range(8) if x not in PL0 + PL1] for q in range(3)][:max(0, args.nearly - 3 * len(PL1))]
    et += [(j, q) for j in PL1 for q in range(3)]
    ops = early_ab(et, lambda j, q: G(21) + AL[(j, q)] + 6)
    for j in PL0: ops += even_plain(j, RAW + 12, RAW + 16, OA, lambda j, q: G(23) + AL[(j, q)] + 6)
    if ops:
        ge = S.place(ops, G(21) + 10, G(23) + 71, spread=False); print(f'  early end {ge/72:.2f}')
    g0 = G(24)
    for j in PL1:
        w = stage_write(a128, a64, 0, j, f'v[{RAW}:{RAW+3}]', f'v[{RAW+4}:{RAW+5}]', ('Y2', 0))
        ep = even_plain(j, RAW + 12, RAW + 16, RAW)
        S.place(ep + w[::-1], g0, G(24) + 59, spread=False)
        for q in range(3): assert S.marks[('y0', j, q)] < G(24) + AF[(j, q)] - 1
        g0 = ep[-1].at
    S.place(odd_part(a128, a64, args.npark, G(25) + 63, list(range(8))), g0, G(29) + 59, spread=False)
    M = S.marks
    print('  odd progress', ' '.join(f'{M[("odd",j,2)]/72:.2f}' for j in range(8)))
    owner = lambda buf: divmod((int(buf[2:buf.index(':')]) - 96) // 4, 3)
    for buf, rd in list(zip(b2, r2)) + list(zip(b1, r1)):
        if buf[0] == 'a' and int(buf[2:buf.index(':')]) >= 96: assert M[('odd',) + owner(buf)] < rd.at, buf
    for j in range(args.npark): assert M[('park', j, 2)] < min(pk[2 * j].at, pk[2 * j + 1].at)
    def group(run, g0):
        for p in range(0, 80):
            phi = p / 40
            snap = (list(S.head), [list(x) for x in S.body], {k: list(v) for k, v in S.busy.items()})
            g = g0; ok = True
            for (T, c, h) in run:
                R = rawset(T)
                ad, w = vwrites(R, c, h, int(T > 30), True)
                if T: g = max(g, 72 * (T - 1) + (args.xw if T < 30 else args.xw2))
                if T == 0: w[1].notbefore = B0G + 1
                if T == 31: w[1].notbefore = G(30) + 63
                if T == 16: w[4].notbefore = G(16) + 63
                dl = 72 * (T + 1) + XG0 - 5
                if h == 3 and T < 30: dl = 72 * T + 59
                if T in (32, 33): dl += 72
                if T == 34: dl = G(35) + B35G - 2
                rest = [w[pos] for pos in (2, 3, 0, 5, 4)] + (halo_copy(c, R, int(T > 30)) if h == 1 else [])
                for ops, keep in ((transform(R, ('x', T)) + [ad, w[1]], True), ([A(f'v_lshrrev_b32 v{R + 2 * SLOT[1]}, 15, v{vXW}')] + rest, False)):
                    plan = S.try_place(ops, g + (not keep), dl, 0.0, phi if keep else 0.0)
                    if plan is None: ok = False; break
                    e_ = S.commit(plan)
                    if keep: g = e_
                if not ok: break
            if ok:
                if phi: print(f'  windows {run[0][0]}.. overflow {phi}')
                return g
            S.head, S.body, S.busy = snap
        raise Exception('group')
    if wins:
        g = 0
        for k in range(5): g = group(wins[4 * k:4 * k + 4], g)
        S.place(transform(HR, ('x', 20)) + halo_writes(HR, 1), max(g, G(19) + 50), G(21) + 1, spread=False)
        g = G(args.w31)
        for k in range(20, 24): g = group(wins[k:k + 1], g)
    if 'map' in EXP:
        sym = {'l4': 'U', 'l2': 'x', 'st': 'S', 'w8': 'w', 'w16': 'W', 'r': 'r', 'bar': 'B', 's': '.', 'l0': ':'}
        for t in range(36):
            print(f'{t:2d} ' + ''.join((sym[S.head[g].cls] if S.head[g] is not None else ' ') for g in range(72 * t, 72 * t + 72)) + '|')
            print('   ' + ''.join(str(len(S.body[g])) if S.body[g] else ' ' for g in range(72 * t, 72 * t + 72)) + '|')
    return S

def emit_body(E, S):
    E.nsince = 0
    for t in range(36):
        if t == 24 and 'noburst' not in EXP: burst(E)
        ml = mfma_list(t)
        if getattr(E, 'labels', False): E.raw(f'sub{t}:')
        for m in range(72):
            E.op(ml[m])
            g = 72 * t + m
            if args.fine >= 0 and m == 0: E.e(('s_memrealtime' if args.rt else 's_memtime') + ' s[98:99]')
            if args.fine >= 0 and m == 40:
                E.e(f's_cmp_eq_u32 s{sGEN}, {args.fine}'); E.e(f's_cselect_b32 s{60+t}, s98, s{60+t}')
            if S.head[g] is not None: E.op(S.head[g])
            for o in S.body[g]: E.op(o)

def srd(E, d, b, n):
    E.e(f's_mov_b32 s{d}, s{b}'); E.e(f's_and_b32 s{d+1}, s{b+1}, 0xffff')
    E.e(f's_mov_b32 s{d+2}, {n}'); E.e(f's_mov_b32 s{d+3}, 0x20000')

NWT = 54
PADS = 'nopads' not in EXP
def PS(E, k):
    if args.pro:
        E.e('s_memtime s[94:95]'); E.e('s_waitcnt lgkmcnt(0)'); E.e('s_sub_u32 s94, s94, s96'); E.e(f'v_writelane_b32 v90, s94, {k}')
def wt_task(E):
    wt_addr(E); wt_loads(E); E.e('s_waitcnt vmcnt(0)'); wt_comp(E)
def wt_addr(E):
    e = E.e
    e('s_mul_i32 s73, s70, 43691'); e('s_lshr_b32 s73, s73, 17')
    e('s_mul_i32 s74, s73, 3'); e('s_sub_u32 s74, s70, s74')
    e('s_mul_i32 s75, s73, 43691'); e('s_lshr_b32 s75, s75, 17')
    e('s_mul_i32 s76, s75, 3'); e('s_sub_u32 s76, s73, s76')
    e('v_and_b32 v101, 15, v2'); e('v_lshrrev_b32 v102, 4, v2'); e('v_and_b32 v103, 12, v101')
    e('s_lshl_b32 s78, s74, 2'); e('s_cmp_lt_u32 s74, 2'); e('s_cselect_b32 s77, 1, 0'); e('s_cselect_b32 s78, s78, 32')
    e('v_mul_u32_u24 v103, s77, v103'); e('v_add_u32 v103, v103, v101'); e('v_add_u32 v103, s78, v103')
    e(f'v_lshl_add_u32 v103, v103, 1, s{sW96}')
    e('v_mul_u32_u24 v104, 3072, v102'); e('v_add_u32 v103, v103, v104')
    e('s_mul_i32 s79, s76, 73728'); e('s_mul_i32 s80, s75, 12288'); e('s_add_u32 s79, s79, s80')
    e('s_add_u32 s80, s79, 221184'); e('s_add_u32 s81, s79, 442368')
def wt_loads(E):
    e = E.e
    for r in range(3):
        for k in range(8):
            e(f'buffer_load_ushort v{110+r*8+k}, v103, s[60:63], s{79+r} offen offset:{k*384}')
    e('s_mul_i32 s82, s76, 3072'); e('s_lshl_b32 s83, s74, 10'); e('s_add_u32 s82, s82, s83')
    e('s_mul_i32 s83, s75, 36864'); e('s_lshl_b32 s84, s83, 2'); e('s_add_u32 s83, s83, s82'); e('s_add_u32 s84, s84, s82')
def wt_comp(E):
    e = E.e
    for i in range(24): e(f'v_lshlrev_b32 v{110+i}, 16, v{110+i}')
    f1 = 2 * P * P * (P * P - Q * Q); f3 = 2 * Q * Q * (Q * Q - P * P)
    al, be = Fr(1), Q ** 2
    def put(pos, src):
        O = 152 + 4 * pos
        for k in range(4): e(f'v_cvt_pk_bf16_f32 v{O+k}, v{src+2*k}, v{src+2*k+1}')
        if pos == 0: e(f's_add_u32 s85, s83, {24*36864}')
        elif pos == 5: e(f's_add_u32 s85, s83, {30*36864}')
        else: e(f's_add_u32 s85, s84, {(pos-1)*36864}')
        e(f'buffer_store_dwordx4 v[{O}:{O+3}], v{vU}, s[8:11], s85 offen sc1')
    for (pos, g, z) in ((1, al / f1, P), (3, be / f3, Q)):
        for k in range(8):
            e(f'v_mul_f32 v{136+k}, {f32(g)}, v{110+k}'); e(f'v_fmac_f32 v{136+k}, {f32(g*z*z)}, v{126+k}')
            e(f'v_fmamk_f32 v{144+k}, v{118+k}, {f32(g*z)}, v{136+k}'); e(f'v_fmac_f32 v{136+k}, {f32(-g*z)}, v{118+k}')
        put(pos, 144); put(pos + 1, 136)
    put(0, 110); put(5, 126)

KN = 'standalone__winograd__vision_kernel'
def main_kernel(E):
    e = E.e
    E.raw(f""".globl {KN}
.p2align 8
.type {KN},@function
{KN}:""")
    i0 = len(E.L); E.lds = verify.Lds()
    e('s_cmp_ge_u32 s2, 256'); e('s_cbranch_scc1 main_done')
    e('s_load_dwordx4 s[4:7], s[0:1], 0'); e('s_load_dwordx4 s[12:15], s[0:1], 16'); e('s_load_dwordx2 s[8:9], s[0:1], 32')
    if STAMP: e(f'{"s_memrealtime" if args.rt else "s_memtime"} s[96:97]'); e('s_memrealtime s[98:99]')
    if args.fine >= 0: e(('s_memrealtime' if args.rt else 's_memtime') + ' s[96:97]'); e('s_memrealtime s[98:99]'); e('s_waitcnt lgkmcnt(0)'); e('s_mov_b32 s97, s98')
    if 'nocpf' not in EXP:
        e('s_getpc_b64 s[92:93]'); E.raw('pcref:')
        e('v_and_b32 v70, 3, v0'); e('v_lshrrev_b32 v71, 6, v0'); e('v_lshl_add_u32 v70, v70, 7, v71')
        e('s_lshr_b32 s94, s2, 3'); e('s_lshl_b32 s94, s94, 2'); e('v_add_lshl_u32 v70, v70, s94, 7')
        e('v_min_u32 v70, code_end-pcref-4, v70')
        e('v_add_co_u32 v72, vcc, s92, v70'); e('v_mov_b32 v73, s93'); e('s_nop 0'); e('v_addc_co_u32 v73, vcc, 0, v73, vcc')
        E.op(VM('global_load_dword v76, v[72:73], off', 'c'))
    e('v_lshrrev_b32 v1, 6, v0'); e('v_and_b32 v2, 63, v0')
    e(f'v_readfirstlane_b32 s{sW}, v1')
    e(f'v_lshlrev_b32 v{vU}, 4, v2'); e('v_mov_b32 v98, 0')
    e('v_lshrrev_b32 v3, 3, v2'); e('v_and_b32 v4, 7, v2')
    e('v_mul_u32_u24 v5, 3072, v3'); e(f'v_lshl_add_u32 v{vXW}, v4, 3, v5')
    e(f's_lshr_b32 s{sT2}, s2, 3'); e(f's_and_b32 s{sCB}, s{sT2}, 3'); e(f's_lshr_b32 s{sT2}, s{sT2}, 2')
    e(f's_and_b32 s{sTR}, s2, 7'); e(f's_lshl_b32 s{sTR}, s{sTR}, 4'); e(f's_add_u32 s{sTR}, s{sTR}, s{sT2}')
    e(f's_and_b32 s90, s{sW}, 1'); e(f's_lshr_b32 s91, s{sW}, 1')
    e(f's_mul_i32 s{sH}, s90, 24576'); e(f's_mul_i32 s{sT3}, s91, 1536'); e(f's_add_u32 s{sH}, s{sH}, s{sT3}')
    e(f's_mul_i32 s{sPFD}, s{sW}, {ROWB}'); e(f's_sub_u32 s{sPFD}, s{sPFD}, s{sH}')
    e(f's_mul_i32 s{sWP}, s{sCB}, 49152'); e(f's_add_u32 s{sWP}, s{sWP}, s{sH}')
    E.op(rows_setup())
    e(f's_mul_i32 s{sW96}, s{sW}, 96'); e(f's_mul_i32 s{sT2}, s{sW}, 9216')
    e('s_mov_b32 s70, s2'); e(f'v_mov_b32 v80, v{vXW}')
    wt_addr(E)
    PR = [8 + 12 * i for i in range(5)]
    poll = lambda: E.op(VM('buffer_load_dword v97, v98, s[64:67], 0 offen offset:128 sc1', 'poll'))
    def xl(h):
        for r in range(6):
            E.op(VM(f'buffer_load_dwordx2 v[{PR[h]+2*r}:{PR[h]+2*r+1}], v80, s[4:7], s{sROW+r} offen offset:{h*384}', ('p', h)))
    nwt = 0 if "forcefb" in EXP else NWT
    e('s_waitcnt lgkmcnt(0)')
    if args.pro: e('v_mov_b32 v90, 0')
    PS(E, 0)
    srd(E, 60, 6, WB)
    e('s_and_b32 s5, s5, 0xffff'); e(f's_mov_b32 s6, {XB}'); e('s_mov_b32 s7, 0x20000')
    e(f's_add_u32 s8, s8, s{sT2}'); e('s_addc_u32 s9, s9, 0')
    e('s_and_b32 s9, s9, 0xffff'); e(f's_mov_b32 s10, {UB-3*9216}'); e('s_mov_b32 s11, 0x20000')
    srd(E, 64, 14, 256); e('s_mov_b64 s[68:69], s[14:15]')
    if 'tlb' in EXP:
        e(f's_mov_b32 s10, {UB+4096}'); e(f's_mov_b32 s88, {UB}')
        e('buffer_load_dword v78, v98, s[8:11], s88 offen'); e('buffer_load_dword v79, v98, s[64:67], 0 offen offset:128 sc1')
    e(f's_cmp_lt_u32 s2, {nwt}'); e('s_cbranch_scc1 wt_path')
    E.vm = []
    if args.xdelay: e(f's_sleep {args.xdelay}')
    def helper():
        e('s_lshr_b32 s73, s2, 3'); e('s_sub_u32 s73, s73, 7'); e('s_lshl_b32 s74, s73, 2'); e(f's_add_u32 s74, s74, s{sW}')
        e('s_and_b32 s75, s2, 7'); e('s_lshl_b32 s75, s75, 9'); e('s_add_u32 s74, s74, s75'); e('s_mul_i32 s74, s74, 24576')
        e('s_cmp_lt_u32 s73, 18'); e(f's_cselect_b32 s74, s74, {OOB}'); e(f'v_mul_u32_u24 v81, 24, v{vU}')
        e('buffer_load_dword v81, v81, s[4:7], s74 offen')
    if args.help_at == 0: helper()
    xl(0)
    if args.help_at == 1: helper()
    xl(1)
    if args.help_at == 2: helper()
    e('s_branch wt_join')
    E.raw('wt_path:')
    vm0 = list(E.vm)
    wt_loads(E); PS(E, 1)
    e('s_waitcnt vmcnt(0)'); PS(E, 2)
    wt_comp(E); PS(E, 3); xl(0)
    E.raw('wt_join:')
    E.vm = list(vm0)
    PS(E, 5)
    e('s_and_b32 s13, s13, 0xffff'); e(f's_mov_b32 s14, {XB}'); e('s_mov_b32 s15, 0x20000')
    e('v_lshrrev_b32 v5, 4, v2'); e(f'v_mul_u32_u24 v6, {PLS}, v5'); e('v_lshrrev_b32 v5, 1, v5')
    e('v_lshl_add_u32 v6, v5, 6, v6'); e(f'v_and_b32 v5, 0xf0, v{vU}'); e(f'v_add_u32 v{vR}, v6, v5')
    e('v_lshrrev_b32 v6, 1, v4'); e(f'v_mul_u32_u24 v7, {PLS}, v6'); e('v_lshrrev_b32 v6, 1, v6'); e('v_lshl_add_u32 v7, v6, 6, v7')
    e('v_and_b32 v6, 1, v2'); e('v_lshl_add_u32 v7, v6, 3, v7'); e('v_lshl_add_u32 v7, v3, 4, v7')
    e(f's_lshl_b32 s{sT2}, s90, 7'); e(f's_mul_i32 s{sT3}, s91, 1056'); e(f's_add_u32 s{sT2}, s{sT2}, s{sT3}')
    e(f'v_add_u32 v7, s{sT2}, v7'); e(f'v_lshl_or_b32 v{vXW}, v7, 15, v{vXW}')
    e(f's_mul_i32 s{sRB}, s{sW}, {PLS}'); e(f's_lshl_b32 s{sT3}, s91, 6'); e(f's_add_u32 s{sRB}, s{sRB}, s{sT3}')
    e(f's_lshl_b32 s{sT3}, s90, 4'); e(f's_add_u32 s{sRB}, s{sRB}, s{sT3}')
    e(f's_mul_i32 s{sOUT}, s{sTR}, {4*ROWB}'); e(f's_mul_i32 s{sT3}, s{sCB}, 49152'); e(f's_add_u32 s{sOUT}, s{sOUT}, s{sT3}')
    e(f's_mul_i32 s{sT3}, s{sW}, 12288'); e(f's_add_u32 s{sOUT}, s{sOUT}, s{sT3}')
    e(f's_mov_b32 s{sOUT3}, {OOB}'); e(f's_mov_b32 s{sGEN}, 0'); e(f's_mov_b32 s{sUW}, 0')
    e(f's_lshl_b32 s{sT3}, s{sW}, 4'); e(f's_mov_b32 s{sEXM}, 0xfff'); e(f's_mov_b32 s{sEXM+1}, 0'); e(f's_lshl_b64 s[{sEXM}:{sEXM+1}], s[{sEXM}:{sEXM+1}], s{sT3}')
    e('s_mov_b32 s58, 0x0fff0fff'); e('s_mov_b32 s59, 0')
    for r, v in ((sNSIG, -SIG), (sNP2, -P * P), (sIK, 1 / KAP), (sP, P), (sNP, -P), (sNSK, -SIG / KAP), (sK, KAP),
                 (sP2, P * P), (sQT, 1 / (Q * Q)), (s2P, 2 * P), (sP3h, P ** 3 / 2)):
        e(f's_mov_b32 s{r}, {f32(v)}')
    e(f's_mov_b32 s{sMASK}, 0xffff0000')
    E.op(stage_addr(AY, AY2, AYR)); e(f'v_add_u32 v{AYR}, s{sRB}, v{vU}')
    if PADS:
        for r in [RAW, RAW + 1, RAW + 11, RAW + 23, RAW + 32, RAW + 35, TMP + 4]: e(f'v_mov_b32 v{r}, 0')
        e(f's_mov_b32 s{sT0}, 0')
    e(f's_cmp_gt_u32 s{sCB}, 0'); e(f's_cselect_b32 s{sT3}, 384, 0'); e(f's_cselect_b32 s{sT4+1}, 0, {OOB}')
    e(f's_add_u32 s{sH}, s{sH}, s{sT3}'); e(f's_add_u32 s{sT4}, s{sT3}, 49152')
    e(f's_cmp_eq_u32 s{sCB}, 3'); e(f's_cselect_b32 s{sT4}, {OOB}, s{sT4}')
    e('s_mov_b32 s56, 0xffff0000'); e('s_mov_b32 s57, 0')
    e(f's_cmp_ge_u32 s2, {nwt}'); e('s_cbranch_scc1 pub_skip')
    if PADS: e('s_branch do_warm'); E.raw('wt_ret:')
    e('s_mov_b32 s87, 1'); e(f's_cmp_lg_u32 s{sW}, 0')
    e(f's_waitcnt vmcnt({6 if "ack6" in EXP else 0})'); e('s_barrier'); e('s_cbranch_scc1 wt_pub')
    e('s_atomic_add s87, s[68:69], 0 glc'); e('s_waitcnt lgkmcnt(0)'); PS(E, 4)
    e(f's_cmp_lg_u32 s87, {NWT-1}'); e('s_cbranch_scc1 wt_pub')
    e('s_atomic_add s87, s[68:69], 128')
    E.raw('wt_pub:')
    xl(1); E.vm = list(vm0)
    E.raw('pub_skip:')
    PS(E, 6)
    E.op(halo_loads(PR[4], 'ph'))
    for h in range(2, 4): xl(h)
    PS(E, 7)
    NU1 = 9 if args.uearly else sum(g < 72 for g in UG)
    def uloads0():
        for i in range(9):
            if i % 3 == 0: E.op(usoff(0, i // 3))
            E.op(uload(0, i // 3, i % 3))
        for i in range(NU1):
            if i % 3 == 0: E.op(usoff(1, i // 3))
            E.op(uload(1, i // 3, i % 3))
        if NU1 % 3 == 0 and NU1 < 9: E.op(usoff(1, NU1 // 3))
    EARLY = args.early
    for h in range(4):
        if h == EARLY - 1: poll()
        if args.x1at == h:
            for T in range(2): E.op(xloads(RAW + 12 * T, 1, T, ('x', T)))
        if h == EARLY:
            assert args.x1at <= h
            E.op(Wait(['poll'])); e('v_readfirstlane_b32 s72, v97'); e('s_nop 0'); e('s_cmp_eq_u32 s72, 0'); e('s_cbranch_scc1 not_yet')
            vm1 = list(E.vm); uloads0(); E.vm = vm1
            E.raw('not_yet:')
        E.op(transform_pk(PR[h], ('p', h), 176))
        ad, w = vwrites(PR[h], 0, h)
        E.op(ad)
        for pos in range(6): E.op(w[pos])
        PS(E, 8 + h)
        if h == args.haloat: E.op(transform_pk(PR[4], 'ph', 176)); E.op(halo_writes(PR[4], 0, True))
    PS(E, 12)
    if EARLY < 4: e('s_cmp_lg_u32 s72, 0'); e('s_cbranch_scc1 no_poll')
    poll()
    E.raw('no_poll:')
    if PADS:
        e(f's_cmp_lt_u32 s2, {nwt}'); e('s_cbranch_scc1 warm_done')
        E.raw('do_warm:')
        e('s_mov_b64 vcc, -1')
        for k in range(3): e(f's_cmp_eq_u32 s{sW}, {k}'); e(f's_cbranch_scc1 pad{k}')
        e('s_branch pad3')
        E.raw('warm_ret:'); e('s_mov_b64 vcc, 0')
        e(f's_cmp_lt_u32 s2, {nwt}'); e('s_cbranch_scc1 wt_ret')
        E.raw('warm_done:')
    e('s_mov_b32 s86, 0')
    if EARLY < 4: e('s_cmp_lg_u32 s72, 0'); e('s_cbranch_scc1 u_done')
    E.op(Wait(['poll']))
    PS(E, 13)
    E.raw('poll_loop:')
    e('v_readfirstlane_b32 s87, v97'); e('s_add_u32 s86, s86, 1')
    e('s_cmp_lg_u32 s87, 0'); e('s_cbranch_scc1 u_ready')
    e('buffer_load_dword v97, v98, s[64:67], 0 offen offset:128 sc1')
    e('s_cmp_lt_u32 s86, 512'); e('s_waitcnt vmcnt(0)'); e('s_cbranch_scc1 poll_loop')
    e('s_mov_b32 s70, 0'); e('s_branch wt_loop')
    E.raw('u_ready:')
    PS(E, 14)
    uloads0()
    E.raw('u_done:')
    if args.pro: e('v_writelane_b32 v90, s86, 17')
    E.op(Bar())
    for F in range(3): E.op(vread(F))
    E.op(Stamp(0))
    for i in range(args.idle): e('s_sleep 37')
    PS(E, 15)
    pro_vm = list(E.vm); iw = len(E.L); e('s_waitcnt vmcnt(0) lgkmcnt(0)')
    if args.pro:
        PS(E, 16)
        e('s_mov_b32 s10, 0x400000'); e('s_lshl_b32 s94, s2, 10'); e('s_add_u32 s94, s94, 0x300000'); e(f's_mul_i32 s95, s{sW}, {9216-256}'); e('s_sub_u32 s94, s94, s95')
        e(f'v_lshrrev_b32 v91, 2, v{vU}'); e('buffer_store_dword v90, v91, s[8:11], s94 offen'); e('s_waitcnt vmcnt(0)'); e(f's_mov_b32 s10, {UB-3*9216}')
    S = build_body()
    E2 = Emit(); emit_body(E2, S)
    E.vm = list(E2.vm); E.lg = list(E2.lg); st = (list(E.vm), list(E.lg)); E.late = 0
    k = NU1; assert all(t[:2] == ('U', 1) for t in pro_vm[-k:])
    E.L[iw] = f'    s_waitcnt vmcnt({k}) lgkmcnt(0)'
    print('entry vmcnt', k)
    lds = E.lds; E.lds = None
    if PADS: e('s_branch blk_loop'); E.raw('.p2align 12')
    else: E.raw('.p2align 6')
    E.raw('blk_loop:'); i1 = len(E.L)
    E.labels = True
    emit_body(E, S)
    print('late (unplanned) waits in body:', E.late)
    assert (E.vm, E.lg) == st, (E.vm, st)
    e(f's_add_u32 s{sOUT3}, s{sOUT}, {3*ROWB}'); e(f's_add_u32 s{sOUT}, s{sOUT}, {32*ROWB}')
    e(f's_add_u32 s{sGEN}, s{sGEN}, 1'); e(f's_cmp_lt_u32 s{sGEN}, 2'); e('s_cbranch_scc1 blk_loop')
    def tail(E):
        SPOL['Y3'] = SPOL['T']
        lab = ('Y3', -1)
        kg = [(g8, k) for k in range(3) for g8 in range(4)]
        buf = lambda n: f'v[{S3+16+4*(n-4)}:{S3+16+4*(n-4)+3}]'
        for n in range(NS35, 8): E.op(rb_store(f'v[{S4+4*n}:{S4+4*n+3}]', sOUT3, 0, *kg[n], lab))
        if NS35 == 8: E.e('s_nop 3')
        E.op(cvt_stage(S4, AY, AY2, Y3U, lab, js=range(NJ35, 8), q2last=True))
        E.op(Bar()); lo = 8
        for n in range(lo, 12): E.op(rb_read(AYR, Y3U, buf(n), *kg[n], lab))
        for n in range(lo, 12): E.op(rb_store(buf(n), sOUT3, 0, *kg[n], lab))
    i2 = len(E.L)
    V = Emit(); V.lds = lds; V.vm = list(E.vm); V.lg = list(E.lg)
    V.blk = 0; emit_body(V, S); V.blk = 1; emit_body(V, S); V.blk = 2; tail(V)
    tail(E)
    errs = verify.check(E.L[i0:i2] + E.L[i1:]) + lds.errs
    for x in errs[:30]: print('VERIFY:', x)
    print('verify errors:', len(errs))
    if STAMP:
        e('s_waitcnt vmcnt(0)')
        e(f'{"s_memrealtime" if args.rt else "s_memtime"} s[92:93]'); e('s_memrealtime s[94:95]')
        e('s_load_dwordx2 s[16:17], s[0:1], 24'); e('s_waitcnt lgkmcnt(0)')
        e(f's_cmp_lg_u32 s2, {args.fwg}'); e('s_cbranch_scc1 main_done'); e(f's_cmp_lg_u32 s{sW}, 0'); e('s_cbranch_scc1 main_done')
        srd(E, 4, 16, 256)
        e('v_mov_b32 v1, 0')
        n = len(BARS) + 1
        def put(k):
            e(f'v_mov_b32 v2, s{sT0}'); e(f'buffer_store_dword v2, v1, s[4:7], 0 offen offset:{4*k}')
            if k == args.probe: e(f's_mov_b32 s{sT1}, s{sT0}')
        e(f's_sub_u32 s{sT0}, s92, s96'); put(0)
        e(f's_sub_u32 s{sT0}, s94, s98'); put(1)
        e(f's_sub_u32 s{sT0}, s60, s96'); put(2)
        e(f's_sub_u32 s{sT0}, s62, s60'); put(3)
        for k in range(2, n):
            e(f's_sub_u32 s{sT0}, s{60+2*k}, s{60+2*(k-1)}'); put(2 + k)
        e(f's_sub_u32 s{sT0}, s92, s{60+2*(n-1)}'); put(2 + n)
        if args.probe >= 0:
            e(f's_min_u32 s{sT1}, s{sT1}, 400000')
            if args.rt: e(f's_min_u32 s{sT1}, s{sT1}, 20000'); e(f's_lshl_b32 s{sT1}, s{sT1}, 3')
            else: e(f's_lshr_b32 s{sT1}, s{sT1}, 2'); e(f's_mul_i32 s{sT1}, s{sT1}, 1638'); e(f's_lshr_b32 s{sT1}, s{sT1}, 10')
            E.raw('spin:'); e('s_memrealtime s[90:91]'); e('s_waitcnt lgkmcnt(0)'); e('s_sub_u32 s90, s90, s94'); e(f's_cmp_lt_u32 s90, s{sT1}'); e('s_cbranch_scc1 spin')
    if args.fine >= 0:
        e('s_waitcnt vmcnt(0)'); e(('s_memrealtime' if args.rt else 's_memtime') + ' s[98:99]'); e('s_memrealtime s[56:57]')
        e('s_load_dwordx2 s[16:17], s[0:1], 32'); e('s_waitcnt lgkmcnt(0)')
        e(f's_cmp_lg_u32 s{sW}, 0'); e('s_cbranch_scc1 main_done')
        srd(E, 4, 16, 0x400000)
        e('s_lshl_b32 s16, s2, 8'); e('s_add_u32 s16, s16, 0x200000'); e('v_mov_b32 v1, 0')
        for k in range(41):
            if k == 0: e(f's_sub_u32 s{sT0}, s60, s96')
            elif k < 36: e(f's_sub_u32 s{sT0}, s{60+k}, s{59+k}')
            elif k == 36: e(f's_sub_u32 s{sT0}, s98, s95')
            elif k == 37: e(f's_sub_u32 s{sT0}, s98, s96')
            elif k == 38: e(f's_mov_b32 s{sT0}, s97')
            elif k == 39: e(f's_mov_b32 s{sT0}, s56')
            elif k == 40: e(f's_getreg_b32 s{sT0}, hwreg(HW_REG_XCC_ID)')
            e(f'v_mov_b32 v2, s{sT0}'); e(f'buffer_store_dword v2, v1, s[4:7], s16 offen offset:{4*k}')
    E.raw('main_done:'); e('s_endpgm')
    E.raw('code_end:')
    E.raw('wt_loop:')
    wt_task(E)
    e('s_add_u32 s70, s70, 1'); e(f's_cmp_lt_u32 s70, {NWT}'); e('s_cbranch_scc1 wt_loop')
    e('s_waitcnt vmcnt(0)'); e('s_branch u_ready')
    return S

def kd(name, vg, acc_off, sg):
    return f""".amdhsa_kernel {name}
  .amdhsa_next_free_vgpr {vg}
  .amdhsa_next_free_sgpr {sg}
  .amdhsa_accum_offset {acc_off}
  .amdhsa_group_segment_fixed_size 0
  .amdhsa_kernarg_size 40
  .amdhsa_user_sgpr_count 2
  .amdhsa_user_sgpr_kernarg_segment_ptr 1
  .amdhsa_system_sgpr_workgroup_id_x 1
  .amdhsa_ieee_mode 0
.end_amdhsa_kernel"""

def add_pads(E):
    import subprocess, re, tempfile
    i1 = E.L.index('blk_loop:'); i2 = E.L.index('main_done:')
    tmp = tempfile.mkdtemp()
    txt = '\n'.join(l for l in E.L if l != '.p2align 3') + '\n.text\n' + ''.join(f'pad{k}:\n' for k in range(4))
    open(tmp + '/a.s', 'w').write(txt)
    subprocess.run(['clang', '-x', 'assembler', '-target', 'amdgcn-amd-amdhsa', '-mcpu=gfx950', '-c', tmp + '/a.s', '-o', tmp + '/a.o'], check=True)
    dis = subprocess.run(['llvm-objdump', '-d', '--mcpu=gfx950', tmp + '/a.o'], capture_output=True, text=True).stdout
    dis = dis[dis.index('<blk_loop>:' if '<blk_loop>:' in dis else '<sub0>:'):]
    sizes = [4 * len(m.group(1).split()) for m in re.finditer(r'// [0-9A-F]{12}: ((?:[0-9A-F]{8} ?)+)', dis)]
    out = []; addr = 0; n = 0; pads = []; want = 0; inburst = False
    for l in E.L[i1 + 1:i2]:
        if l == '.p2align 3':
            if addr % 8: out.append('    s_nop 0'); addr += 4
            inburst = True
            continue
        out.append(l)
        if not l.startswith('    '): continue
        addr += sizes[n]; n += 1
        mf = l.strip().startswith('v_mfma')
        if mf: inburst = False
        if addr >= want and (mf or inburst):
            pads.append(len(out)); out.append(None); addr += 4
            if inburst: out.append('    s_nop 0'); addr += 4
            want += 4096
    for k, i in enumerate(pads):
        out[i] = f'pad{k}:\n    s_cbranch_vccnz ' + (f'pad{k+4}' if k + 4 < len(pads) else 'warm_ret')
    E.L[i1 + 1:i2] = out
    print('pads', len(pads), 'loop+tail bytes', addr)

def main():
    E = Emit()
    E.raw("""; 3x3 conv via 1D Winograd F(4,3) along H + direct taps along W (generated by gen/gen11.py)
; @launch grid=(256,1,1) block=(256,1,1) lds=163840
.amdgcn_target "amdgcn-amd-amdhsa--gfx950"
.text""")
    load = main_kernel(E)
    E.raw('.section .rodata,"a"\n.p2align 6')
    E.raw(kd(KN, 512, 256, 102))
    if PADS: add_pads(E)
    open(args.out, 'w').write('\n'.join(E.L) + '\n')
    print(' '.join(f'{t}:{load.cycles(t)}' for t in range(36)), ' total', sum(load.cycles(t) for t in range(36)))
main()
```

```python
import sys, struct, argparse, os
sys.path.insert(0, os.path.dirname(os.path.abspath(__file__)))
import verify
from fractions import Fraction as Fr

ap = argparse.ArgumentParser()
ap.add_argument('out', nargs='?', default='standalone__winograd__vision.s')
ap.add_argument('--stamp', action='store_true')
ap.add_argument('--pro', action='store_true')
ap.add_argument('--help_at', type=int, default=9)
ap.add_argument('--early', type=int, default=9)
ap.add_argument('--haloat', type=int, default=1)
ap.add_argument('--span', type=int, default=0)
ap.add_argument('--rt', action='store_true')
ap.add_argument('--psleep', type=int, default=0)
ap.add_argument('--xdelay', type=int, default=0)
ap.add_argument('--idle', type=int, default=0)
ap.add_argument('--idle2', type=int, default=0)
ap.add_argument('--fine', type=int, default=-1)
ap.add_argument('--fwg', type=int, default=0)
ap.add_argument('--exp', default='')
ap.add_argument('--upol', default=' sc1')
ap.add_argument('--xpol', default='')
ap.add_argument('--xpol2', default='')
ap.add_argument('--xr2', default='012345')
ap.add_argument('--spol', default=' sc1')
ap.add_argument('--pollat', type=int, default=9)
ap.add_argument('--chkat', type=int, default=4)
ap.add_argument('--x1at', type=int, default=2)
ap.add_argument('--fpol', default='')
ap.add_argument('--pf', default='18f00,20f01,21f02,23f03')
ap.add_argument('--pl0', default='0')
ap.add_argument('--pl1', default='7')
ap.add_argument('--nearly', type=int, default=10)
ap.add_argument('--xg2', type=int, default=0)
ap.add_argument('--xsp2', type=int, default=4)
ap.add_argument('--xl2', type=int, default=1)
ap.add_argument('--npark', type=int, default=2)
ap.add_argument('--b35', type=int, default=51)
ap.add_argument('--ns35', type=int, default=6)
ap.add_argument('--skew', type=int, default=1)
ap.add_argument('--uearly', type=int, default=1)
ap.add_argument('--w31', type=float, default=30.1)
ap.add_argument('--xw', type=int, default=46)
ap.add_argument('--xw2', type=int, default=26)
ap.add_argument('--spols', default='nnnnn')
ap.add_argument('--b34', type=int, default=75)
ap.add_argument('--b0g', type=int, default=17)
ap.add_argument('--nj35', type=int, default=7)
ap.add_argument('--y3end', type=float, default=1.4)
ap.add_argument('--stg', default='6,14,18,27,54,57,61')
ap.add_argument('--stp', default='24.1,27.0,31.1,34.97')
ap.add_argument('--upf', default='31,1,7,12,18,25')
ap.add_argument('--ord', default='c6')
ap.add_argument('--ug', default='')
ap.add_argument('--xug', default='29,32,36,40,44,48,52,55,59')
ap.add_argument('--xg', type=int, default=31)
ap.add_argument('--xsp', type=int, default=4)
ap.add_argument('--probe', type=int, default=-1)
args = ap.parse_args()
XR2 = [int(c) for c in args.xr2]
EXP = set(x for x in args.exp.split(',') if x)
STAMP = args.stamp

def f32(x): return '0x%08x' % struct.unpack('<I', struct.pack('<f', float(x)))[0]

P = Fr(9, 16); Q = Fr(2); SIG = P * P + Q * Q; KAP = P * P * Q * Q
XB = 512 * 512 * 192 * 2
WB = 9 * 192 * 192 * 2
UB = 36 * 36864
ROWB = 512 * 384
OOB = 0x7F000000

UNIT = 2080
PLS = 40704
def plane(g): return g * PLS + (g >> 1) * 64
HOFF = 19 * UNIT
DUMMY = plane(3) + HOFF + 1152
assert DUMMY + 256 <= 163840
def rowpos(phi): return (48 - 16 * phi) if phi < 4 else (114 - 16 * (phi - 4))
B0U = {1: 7, 2: 8, 3: 9, 4: 10, 5: 11, 0: 16}
B5U = {2: 12, 3: 13, 4: 14, 5: 15, 0: 17, 1: 18}
Y0U, Y3U = 6, 8
def unit(pos, c):
    if pos == 0: return B0U[c]
    if pos == 5: return B5U[c]
    k = pos - 1
    if c % 2 == 0: return k
    if k < 3: return 4 + k
    return 0 if c == 5 else B5U[5]
def sub(t):
    if t < 24: return 1 + (t & 3), t >> 2
    if t < 30: return 0, (t - 23) % 6
    return 5, t - 30
SLOT = {0: 0, 1: 1, 4: 2, 3: 3, 2: 4, 5: 5}

S3, S4 = 0, 96
RAW = 192
VRING = 228
TMP = 248
vR, vU, vXW = 253, 254, 255
def acc(pos, j, q):
    o = (j * 3 + q) * 4
    if pos == 1: return f'a[{o}:{o+3}]'
    if pos == 2: return f'a[{96+o}:{96+o+3}]'
    if pos in (3, 0): return f'v[{S3+o}:{S3+o+3}]'
    return f'v[{S4+o}:{S4+o+3}]'
def ufrag(t, s, q):
    if t >= 34:
        o = 96 + ((t - 34) * 9 + s * 3 + q) * 4
        return f'a[{o}:{o+3}]'
    i = (t & 1) * 9 + s * 3 + q
    if i < 16: return f'a[{192+4*i}:{192+4*i+3}]'
    return f'v[{240+4*(i-16)}:{240+4*(i-16)+3}]'
def vfrag(F):
    if F >= 340:
        k, f = divmod(F - 340, 10); o = 48 + (k * 4 + f % 4) * 4
        return f'a[{o}:{o+3}]'
    b = VRING + 4 * (F % 3)
    return f'v[{b}:{b+3}]'
sROW = 16
sMASK, sNSIG, sNP2, sIK, sP, sNP, sNSK, sK = 22, 23, 24, 25, 26, 27, 28, 29
sP2, sQT, s2P, sP3h = 30, 31, 34, 35
sW, sGEN, sOUT, sOUT3, sT0, sT1, sT2, sT3 = 38, 39, 40, 41, 42, 43, 44, 45
sEXM = 46
sCB, sTR, sH, sRB, sW96, sWP, sT4 = 48, 49, 50, 51, 52, 53, 54
sPF, sPFD = 100, 101

class Op:
    def __init__(s, text, kind='alu', tag=None, need=(), cls=None):
        s.text, s.kind, s.tag, s.need = text, kind, tag, tuple(need)
        if cls is None:
            m = text.split()[0]
            if m.startswith('v_'): cls = 'v'
            elif m.startswith('s_'): cls = 's'
            elif m.startswith('ds_read'): cls = 'r'
            elif m == 'ds_write_b64': cls = 'w8'
            elif m == 'ds_write_b128': cls = 'w16'
            elif m.startswith('buffer_load_dwordx4'): cls = 'l4'
            elif m.startswith('buffer_load') or m.startswith('global_load'): cls = 'l2'
            elif m.startswith('buffer_store'): cls = 'st'
        s.cls = cls; s.notbefore = None
def A(text, need=()): return Op(text, 'alu', None, need)
def DS(text, tag, need=(), fp=None):
    o = Op(text, 'ds', tag, need); o.fp = fp
    return o
def VM(text, tag, need=()): return Op(text, 'vm', tag, need)
class Grp:
    def __init__(s, ops, cls): s.ops, s.cls, s.notbefore = ops, cls, None
class Wait:
    cls = 's'
    def __init__(s, tags): s.tags = tags; s.notbefore = None
class LgAll:
    cls = 's'; notbefore = None
class BarOnly:
    cls = 'bar'; notbefore = None
class Bar: pass
class Stamp:
    def __init__(s, k): s.k = k

class Emit:
    def __init__(s):
        s.L = []; s.vm = []; s.lg = []; s.late = 0; s.nsince = 0; s.lds = None; s.blk = 0
    def raw(s, x): s.L.append(x)
    def e(s, x): s.L.append('    ' + x)
    def wait(s, tags):
        nv = nl = None
        for tag in tags:
            if tag == 'carry':
                nv = s.nsince if nv is None else min(nv, s.nsince)
                continue
            iv = [i for i, t in enumerate(s.vm) if t == tag]
            if iv:
                n = len(s.vm) - 1 - iv[-1]; nv = n if nv is None else min(nv, n)
            il = [i for i, t in enumerate(s.lg) if t == tag]
            if il:
                n = len(s.lg) - 1 - il[-1]; nl = n if nl is None else min(nl, n)
        parts = []
        if nv is not None:
            nv = min(nv, 63); parts.append(f'vmcnt({nv})'); s.vm = s.vm[max(0, len(s.vm) - nv):] if nv else []
        if nl is not None:
            nl = min(nl, 15); parts.append(f'lgkmcnt({nl})'); s.lg = s.lg[len(s.lg) - nl:] if nl else []
        if parts: s.e('s_waitcnt ' + ' '.join(parts))
        return bool(parts)
    def op(s, o):
        if isinstance(o, (list, tuple)):
            for x in o: s.op(x)
        elif isinstance(o, Grp):
            for x in o.ops: s.op(x)
        elif isinstance(o, Wait): s.wait(o.tags)
        elif isinstance(o, LgAll):
            s.e('s_waitcnt lgkmcnt(0)'); s.lg = []
        elif isinstance(o, BarOnly):
            assert not s.lg, s.lg
            s.e('s_barrier')
            if s.lds: s.lds.barrier()
        elif isinstance(o, Bar):
            s.e('s_waitcnt lgkmcnt(0)'); s.lg = []; s.e('s_barrier')
            if s.lds: s.lds.barrier()
        elif isinstance(o, Stamp):
            if STAMP: s.e(f'{"s_memrealtime" if args.rt else "s_memtime"} s[{60+2*o.k}:{61+2*o.k}]')
        else:
            if o.need and s.wait(o.need): s.late += 1
            if 'nost' in EXP and o.cls == 'st': return
            if 'novr' in EXP and o.cls == 'r' and o.tag[0] == 'V' and o.tag[1] > 2: return
            if 'noodd' in EXP and getattr(o, 'odd', False): return
            s.e(o.text)
            if o.kind == 'ds':
                s.lg.append(o.tag)
                if s.lds:
                    for ranges, label, dg in o.fp:
                        s.lds.access('r' if o.cls == 'r' else 'w', ranges, (label, s.blk + dg), f'blk{s.blk}:{len(s.L)}:{o.text}', strict=(s.blk + dg >= 0))
            elif o.kind == 'vm': s.vm.append(o.tag); s.nsince += 1

def pr(r): return f'v[{r}:{r+1}]'
def transform(R, tag):
    ops = [Wait([tag])]
    t1, t2, t3, t4, x = TMP, TMP + 1, TMP + 2, TMP + 3, TMP + 4
    first = True
    for d in range(2):
        D = [R + 2 * r + d for r in range(6)]
        for i, t in enumerate((t1, t2, t3, t4)):
            ops.append(A(f'v_lshlrev_b32 v{t}, 16, v{D[i+1]}', need=[tag] if first else ())); first = False
        for i in range(1, 5): ops.append(A(f'v_and_b32 v{D[i]}, s{sMASK}, v{D[i]}'))
        for (dd, la, lb, ha, hb, k1, k2) in ((D[0], t4, t2, D[4], D[2], sIK, sNSK), (D[5], t1, t3, D[1], D[3], sK, sNSIG)):
            ops.append(A(f'v_lshlrev_b32 v{x}, 16, v{dd}'))
            ops.append(A(f'v_and_b32 v{dd}, s{sMASK}, v{dd}'))
            ops.append(A(f'v_fmac_f32 v{x}, s{k1}, v{la}'))
            ops.append(A(f'v_fmac_f32 v{dd}, s{k1}, v{ha}'))
            ops.append(A(f'v_fmac_f32 v{x}, s{k2}, v{lb}'))
            ops.append(A(f'v_fmac_f32 v{dd}, s{k2}, v{hb}'))
            ops.append(A(f'v_cvt_pk_bf16_f32 v{dd}, v{x}, v{dd}'))
        for (a1, a2, a3, a4, xx) in ((t1, t2, t3, t4, x), (D[1], D[2], D[3], D[4], t2)):
            ops.append(A(f'v_fma_f32 v{xx}, v{a2}, s{sNP2}, v{a4}'))
            ops.append(A(f'v_fmac_f32 v{a4}, -4.0, v{a2}'))
            ops.append(A(f'v_fma_f32 v{a2}, v{a1}, s{sNP2}, v{a3}'))
            ops.append(A(f'v_fmac_f32 v{a3}, -4.0, v{a1}'))
            ops.append(A(f'v_fma_f32 v{a1}, v{a3}, s{sP}, v{a4}'))
            ops.append(A(f'v_fmac_f32 v{a4}, s{sNP}, v{a3}'))
            ops.append(A(f'v_fma_f32 v{a3}, v{a2}, 2.0, v{xx}'))
            ops.append(A(f'v_fmac_f32 v{xx}, -2.0, v{a2}'))
        ops.append(A(f'v_cvt_pk_bf16_f32 v{D[1]}, v{t1}, v{D[1]}'))
        ops.append(A(f'v_cvt_pk_bf16_f32 v{D[4]}, v{t4}, v{D[4]}'))
        ops.append(A(f'v_cvt_pk_bf16_f32 v{D[3]}, v{t3}, v{D[3]}'))
        ops.append(A(f'v_cvt_pk_bf16_f32 v{D[2]}, v{x}, v{t2}'))
    if 'novalu' in EXP: ops = ops[:1] + [A('s_nop 0') for _ in range(9)]
    return ops

def pkfma(d, a, k, c):
    if isinstance(k, str): sr, m = k, 'op_sel_hi:[1,0,1]'
    elif k % 2 == 0: sr, m = f's[{k}:{k+1}]', 'op_sel_hi:[1,0,1]'
    else: sr, m = f's[{k-1}:{k}]', 'op_sel:[0,1,0]'
    return f'v_pk_fma_f32 {pr(d)}, {pr(a)}, {sr}, {pr(c)} {m}'
def transform_pk(R, tag, T):
    ops = [Wait([tag])]
    def fma(d, a, k, c): ops.append(A(pkfma(d, a, k, c)))
    for d in range(2):
        D = [R + 2 * r + d for r in range(6)]
        p = [T + 2 * r for r in range(6)]; x = T + 12
        for r in range(6):
            ops.append(A(f'v_lshlrev_b32 v{p[r]}, 16, v{D[r]}', need=[tag])); ops.append(A(f'v_and_b32 v{p[r]+1}, s{sMASK}, v{D[r]}'))
        fma(p[0], p[4], sIK, p[0]); fma(p[5], p[1], sK, p[5])
        fma(p[0], p[2], sNSK, p[0]); fma(p[5], p[3], sNSIG, p[5])
        fma(x, p[2], sNP2, p[4]); fma(p[4], p[2], '-4.0', p[4]); fma(p[2], p[1], sNP2, p[3]); fma(p[3], p[1], '-4.0', p[3])
        fma(p[1], p[3], sP, p[4]); fma(p[4], p[3], sNP, p[4]); fma(p[3], p[2], '2.0', x); fma(p[2], p[2], '-2.0', x)
        for r in range(6): ops.append(A(f'v_cvt_pk_bf16_f32 v{D[r]}, v{p[r]}, v{p[r]+1}'))
    return ops

def xoff(h, c): return (h + 4 * (c & 1)) * 384 + (c >> 1) * 128 if 'fullline' in EXP else h * 384 + c * 64
def rawset(T): return RAW + 12 * ((T + (T > 30)) % 3)
def xloads(R, c, h, tag):
    ops = [A(f'v_and_b32 v{R+11}, 0x7fff, v{vXW}')]
    for r in range(6):
        ops.append(VM(f'buffer_load_dwordx2 v[{R+2*r}:{R+2*r+1}], v{R+11}, s[4:7], s{sROW+r} offen offset:{xoff(h, c)}{args.xpol2 if (c & 1 and r in XR2) else args.xpol}', tag))
    return ops

def vwrites(R, c, h, dg=0, two=False):
    ad = A(f'v_lshrrev_b32 v{TMP+4}, 15, v{vXW}')
    w = {}
    for pos in range(6):
        r = R + 2 * SLOT[pos]
        w[pos] = DS(f'ds_write_b64 v{R + 2 * SLOT[1] if (two and pos != 1) else TMP+4}, v[{r}:{r+1}] offset:{unit(pos,c)*UNIT+(48-16*h)*16}', 'w',
                    fp=[([(unit(pos,c)*UNIT+rowpos(p)*16, unit(pos,c)*UNIT+rowpos(p)*16+256) for p in (h, h+4)], ('V', pos, c), dg)])
    return ad, w

def halo_loads(R, tag):
    a, b, c_ = R + 11, R + 10, R + 9
    ops = [A(f'v_and_b32 v{a}, 0xf0, v{vU}'),
           A(f'v_lshrrev_b32 v{a}, 1, v{a}'),
           A(f'v_add_u32 v{a}, s{sW96}, v{a}'),
           A(f'v_mov_b32 v{b}, s{sT4}'),
           A(f'v_mov_b32 v{c_}, s{sT4+1}'),
           A(f'v_cndmask_b32 v{b}, v{b}, v{c_}, s[56:57]'),
           A(f'v_add_u32 v{a}, v{a}, v{b}')]
    for r in range(6):
        ops += [A(f's_sub_u32 s{sT3}, s{sROW+r}, s{sH}'),
                VM(f'buffer_load_dwordx2 v[{R+2*r}:{R+2*r+1}], v{a}, s[4:7], s{sT3} offen', tag)]
    return ops

def halo_writes(R, dg=0, direct=False):
    a, b, c_ = TMP + 4, TMP, TMP + 1
    ops = [A(f'v_and_b32 v{b}, 0xf0, v{vU}'),
           A(f'v_lshrrev_b32 v{b}, 1, v{b}'),
           A(f'v_add_u32 v{b}, s{sW96}, v{b}'),
           A(f'v_and_b32 v{a}, 8, v{b}'),
           A(f'v_lshrrev_b32 v{c_}, 6, v{b}'),
           A(f'v_mul_u32_u24 v{c_}, 192, v{c_}')] + ([A(f'v_cmp_eq_u32 s[92:93], 0, v{c_}')] if direct else []) + [
           A(f'v_add_u32 v{a}, v{a}, v{c_}'),
           A(f'v_bfe_u32 v{c_}, v{b}, 4, 2'),
           A(f'v_mul_u32_u24 v{c_}, {PLS}, v{c_}'),
           A(f'v_add_u32 v{a}, v{a}, v{c_}'),
           A(f'v_and_b32 v{c_}, 32, v{b}'),
           A(f'v_lshl_add_u32 v{a}, v{c_}, 1, v{a}'),
           A(f'v_bfe_u32 v{c_}, v{vU}, 8, 1'),
           A(f'v_lshl_add_u32 v{a}, v{c_}, 4, v{a}'),
           A(f'v_mov_b32 v{c_}, {DUMMY-HOFF}'),
           A(f'v_cndmask_b32 v{a}, v{c_}, v{a}, s[58:59]')]
    for pos in range(6):
        r = R + 2 * SLOT[pos]
        ops.append(DS(f'ds_write_b64 v{a}, v[{r}:{r+1}] offset:{HOFF+32*pos}', 'w',
                      fp=[([(HOFF+c*192+32*pos, HOFF+c*192+32*pos+32) for c in range(6)], 'H', dg)]))
    if direct:
        ops.append(A('s_and_b64 exec, s[92:93], s[58:59]'))
        for pos in range(6):
            r = R + 2 * SLOT[pos]; o = unit(pos, 0) * UNIT + 1024
            ops.append(DS(f'ds_write_b64 v{a}, v[{r}:{r+1}] offset:{o}', 'w', fp=[([(o, o + 32)], ('V', pos, 0), dg)]))
        ops.append(A('s_mov_b64 exec, -1'))
    return ops

def halo_copy(c, R, dg=0):
    lit = sum(unit(pos, c) << (5 * pos) for pos in range(6))
    a, b = R + 4, R + 5
    return [DS(f'ds_read_b128 v[{R}:{R+3}], v{vR} offset:{HOFF+c*192}', 'hc', fp=[([(HOFF+c*192, HOFF+c*192+192)], 'H', dg)]),
            A(f's_mov_b32 s{sT3}, {lit}'),
            A(f'v_bfe_u32 v{a}, v{vU}, 5, 3'),
            A(f'v_mul_u32_u24 v{b}, 5, v{a}'),
            A(f'v_bfe_u32 v{b}, s{sT3}, v{b}, 5'),
            A(f'v_mul_u32_u24 v{b}, 65, v{b}'),
            A(f'v_sub_u32 v{b}, v{b}, v{a}'),
            A(f'v_lshl_add_u32 v{a}, v{b}, 5, v{vR}'),
            Wait(['hc']),
            Grp([A(f's_mov_b64 exec, s[{sEXM}:{sEXM+1}]'),
                 DS(f'ds_write_b128 v{a}, v[{R}:{R+3}] offset:1024', 'w', need=['hc'],
                    fp=[([(unit(pos,c)*UNIT+1024, unit(pos,c)*UNIT+1056)], ('V', pos, c), dg) for pos in range(6)]),
                 A('s_mov_b64 exec, -1')], 'w16')]

def prefetch(reg, g, k, kind='n'):
    sr = sPF
    return [A(f'v_and_b32 v{reg}, 0x1f0, v{vU}'), A(f'v_mul_u32_u24 v{reg}, 96, v{reg}'),
            VM(f'buffer_load_dword v{reg}, v{reg}, s[4:7], s{sr} offen offset:{k*384+g*128}', 'pf')]

def stage_addr(a128, a64, t):
    return [A(f'v_bfe_u32 v{t}, v{vU}, 6, 2'),
            A(f'v_mul_u32_u24 v{a128}, {PLS}, v{t}'),
            A(f'v_and_b32 v{t}, 0x80, v{vU}'),
            A(f'v_lshrrev_b32 v{t}, 1, v{t}'),
            A(f'v_add_u32 v{a128}, v{a128}, v{t}'),
            A(f'v_and_b32 v{t}, 0x40, v{vU}'),
            A(f'v_lshrrev_b32 v{t}, 2, v{t}'),
            A(f'v_add_u32 v{a128}, v{a128}, v{t}'),
            A(f'v_bfe_u32 v{t}, v{vU}, 4, 2'),
            A(f'v_mul_u32_u24 v{t}, 3104, v{t}'),
            A(f'v_add_u32 v{a128}, v{a128}, v{t}'),
            A(f'v_add_u32 v{a128}, s{sW96}, v{a128}'),
            A(f'v_lshrrev_b32 v{t}, 8, v{vU}'),
            A(f'v_lshl_add_u32 v{a64}, v{t}, 3, v{a128}'),
            A(f'v_lshl_add_u32 v{a128}, v{t}, 4, v{a128}')]

def stage_write(a128, a64, u0, j, q4, q2, lab):
    fp = [([(u0*UNIT+g8*3104+j*384, u0*UNIT+g8*3104+j*384+384) for g8 in range(4)], lab[0], lab[1])]
    w = [DS(f'ds_write_b128 v{a128}, {q4} offset:{u0*UNIT+j*384}', 'w', fp=fp),
         DS(f'ds_write_b64 v{a64}, {q2} offset:{u0*UNIT+j*384+64}', 'w', fp=fp)]
    for x in w: x.flo = True
    return w

def cvt_stage(S, a128, a64, u0, lab, js=range(8), nb=None, after0=(), q2last=False):
    ops = []
    for j in js:
        b = S + 12 * j
        w = stage_write(TMP if (after0 and j == 0) else a128, TMP + 1 if (after0 and j == 0) else a64, u0, j, f'v[{b}:{b+3}]', f'v[{b+8}:{b+9}]', lab)
        o = [A(f'v_cvt_pk_bf16_f32 v{b+8+k}, v{b+8+2*k}, v{b+8+2*k+1}') for k in range(2)] + [w[1]]
        o += [A(f'v_cvt_pk_bf16_f32 v{b+k}, v{b+2*k}, v{b+2*k+1}') for k in range(4)] + [w[0]]
        if nb is not None: o[0].notbefore = nb(j)
        if q2last:
            if nb is not None: o[3].notbefore = nb(j) - 6
            o = o[3:] + o[:3]
        ops += o
        if j == 0: ops += list(after0)
    return ops

def rb_read(areg, u0, buf, g8, k, lab):
    o = u0 * UNIT + g8 * 3104 + k * 1024
    return DS(f'ds_read_b128 {buf}, v{areg} offset:{o}', (lab[0], g8, k), fp=[([(o, o + 1024)], lab[0], lab[1])])
SPOL = dict(zip(('Y2', 'Y1', 'Y0', 'Y3', 'T'), [{'s': ' sc1', 'n': ' nt', 'p': '', 'b': ' sc1 nt'}[c] for c in args.spols]))
def rb_store(buf, sbase, rowoff, g8, k, lab):
    return [A(f's_add_u32 s{sT2}, s{sbase}, {rowoff+g8*3072+k*1024}'),
            VM(f'buffer_store_dwordx4 {buf}, v{vU}, s[12:15], s{sT2} offen{SPOL[lab[0]]}', 'st', need=[(lab[0], g8, k)])]

def uload(t, s, q):
    t %= 36
    return VM(f'buffer_load_dwordx4 {ufrag(t,s,q)}, v{vU}, s[8:11], s{sT0} offen offset:{q*1024}{args.upol}', ('U', t, s))
sUW = 36
def usoff(t, s):
    if t >= 36: return A(f's_add_u32 s{sT0}, s{sUW}, {(t%36)*36864+s*3072}')
    if 24 <= t < 30: t = 24 + sub(t)[1]
    return A(f's_mov_b32 s{sT0}, {t*36864+s*3072}')

def vread(F):
    dg = F // 360; F %= 360
    t, f = divmod(F, 10)
    pos, c = sub(t)
    e = 65 if f == 0 else (49 if f == 9 else rowpos(f - 1))
    return DS(f'ds_read_b128 {vfrag(F)}, v{vR} offset:{unit(pos,c)*UNIT+e*16}', ('V', F),
              fp=[([(unit(pos,c)*UNIT+e*16, unit(pos,c)*UNIT+e*16+256)], ('V', pos, c), dg)])

def rows_setup():
    o = [A(f's_mul_i32 s{sT1}, s{sTR}, {4*ROWB}') if 'xsame' not in EXP else A(f's_mov_b32 s{sT1}, {4*ROWB}'),
         A(f's_add_u32 s{sT1}, s{sT1}, s{sWP}'),
         Grp([A(f's_cmp_ge_u32 s{sTR}, 128'), A(f's_cselect_b32 s{sT1}, {OOB}, s{sT1}')], 'r'),
         A(f's_sub_u32 s{sROW}, s{sT1}, {ROWB}'),
         Grp([A(f's_cmp_eq_u32 s{sTR}, 0'), A(f's_cselect_b32 s{sROW}, {OOB}, s{sROW}')], 'r'),
         A(f's_mov_b32 s{sROW+1}, s{sT1}')]
    for r in range(2, 6): o.append(A(f's_add_u32 s{sROW+r}, s{sT1}, {(r-1)*ROWB}'))
    o.append(A(f's_add_u32 s{sPF}, s{sT1}, s{sPFD}'))
    return o

EARLYT = set()
PL0 = [int(c) for c in args.pl0]; PL1 = [int(c) for c in args.pl1]
OA, OB = RAW + 2, RAW + 28
def early_ab(tiles, nb):
    ops = []
    T1, T2, T3 = RAW + 12, RAW + 16, RAW + 20
    for (j, q) in tiles:
        o = (j * 3 + q) * 4
        l = [A(f'v_accvgpr_read_b32 v{T1+r}, a{o+r}') for r in range(4)] + [A(f'v_accvgpr_read_b32 v{T2+r}, a{96+o+r}') for r in range(4)]
        l[4].notbefore = nb(j, q)
        l += [A(f'v_add_f32 v{T3+r}, v{T1+r}, v{T2+r}') for r in range(4)] + [A(f'v_sub_f32 v{T1+r}, v{T1+r}, v{T2+r}') for r in range(4)]
        l += [A(f'v_accvgpr_write_b32 a{o+r}, v{T3+r}') for r in range(4)] + [A(f'v_accvgpr_write_b32 a{96+o+r}, v{T1+r}') for r in range(4)]
        ops += l; EARLYT.add((j, q))
    return ops
def even_plain(j, T1, T2, O, nb=None):
    ops = []
    for q in range(3):
        o = (j * 3 + q) * 4
        l = [A(f'v_accvgpr_read_b32 v{T1+r}, a{o+r}') for r in range(4)]
        if (j, q) not in EARLYT:
            l += [A(f'v_accvgpr_read_b32 v{T2+r}, a{96+o+r}') for r in range(4)] + [A(f'v_add_f32 v{T1+r}, v{T1+r}, v{T2+r}') for r in range(4)]
        m = [A(f'v_add_f32 v{T2+r}, v{S3+o+r}, v{S4+o+r}') for r in range(4)]
        if nb: m[0].notbefore = nb(j, q)
        m += [A(f'v_sub_f32 v{S4+o+r}, v{S3+o+r}, v{S4+o+r}') for r in range(4)]
        m += [A(f'v_fma_f32 v{S3+o+r}, v{T2+r}, s{sQT}, v{T1+r}') for r in range(4)]
        m[-1].mark = ('y0', j, q)
        m += [A(f'v_fmac_f32 v{T2+r}, s{sP2}, v{T1+r}') for r in range(4)]
        m += [A(f'v_cvt_pk_bf16_f32 v{O+2*q+h}, v{T2+2*h}, v{T2+2*h+1}') for h in (0, 1)]
        ops += l + m
    return ops
def burst(E):
    a128, a64 = TMP, TMP + 1
    for i in range(args.idle2): E.e('s_sleep 37')
    js = [j for j in range(8) if j not in PL0 and j not in PL1]
    if js[0] >= 6: E.e('s_nop 7')
    E.raw('.p2align 3')
    neg = 'neg_lo:[0,1] neg_hi:[0,1]'
    pend = []
    for j in PL0:
        w = stage_write(a128, a64, 0, j, f'v[{OA}:{OA+3}]', f'v[{OA+4}:{OA+5}]', ('Y2', 0))
        E.op(w[0]); pend.append(w[1])
    for n, j in enumerate(js):
        O1 = (OB, OA)[n & 1]
        for q in range(3):
            o = (j * 3 + q) * 4
            T1, T2 = RAW + 12 + (q & 1) * 8, RAW + 12 + (q & 1) * 8 + 4
            for r in range(4): E.e(f'v_accvgpr_read_b32 v{T1+r}, a{o+r}')
            if (j, q) not in EARLYT:
                for r in range(4): E.e(f'v_accvgpr_read_b32 v{T2+r}, a{96+o+r}')
                for h in (0, 2): E.e(f'v_pk_add_f32 {pr(T1+h)}, {pr(T1+h)}, {pr(T2+h)}')
            for h in (0, 2): E.e(f'v_pk_add_f32 {pr(T2+h)}, {pr(S3+o+h)}, {pr(S4+o+h)}')
            for h in (0, 2): E.e(f'v_pk_add_f32 {pr(S4+o+h)}, {pr(S3+o+h)}, {pr(S4+o+h)} {neg}')
            for h in (0, 2): E.e(pkfma(S3 + o + h, T2 + h, sQT, T1 + h))
            for h in (0, 2): E.e(pkfma(T1 + h, T1 + h, sP2, T2 + h))
            for h in (0, 1): E.e(f'v_cvt_pk_bf16_f32 v{O1+2*q+h}, v{T1+2*h}, v{T1+2*h+1}')
            w = stage_write(a128, a64, 0, j, f'v[{O1}:{O1+3}]', f'v[{O1+4}:{O1+5}]', ('Y2', 0))
            if q == 0 and pend: E.op(pend.pop())
            if q == 1: E.op(w[0])
            if q == 2: pend.append(w[1])
    E.op(pend); E.op(Bar())

def odd_part(a128, a64, npark, g_ok, order):
    ops = []
    T1, T2 = RAW + 12, RAW + 16; wr = {}
    for n, j in enumerate(order):
        O1 = RAW + ((n + 1) & 1) * 6
        for q in range(3):
            o = (j * 3 + q) * 4
            if (j, q) in EARLYT:
                for r in range(4): ops.append(A(f'v_accvgpr_read_b32 v{T1+r}, a{96+o+r}'))
            else:
                for r in range(4): ops.append(A(f'v_accvgpr_read_b32 v{T1+r}, a{o+r}'))
                for r in range(4): ops.append(A(f'v_accvgpr_read_b32 v{T2+r}, a{96+o+r}'))
                for r in range(4): ops.append(A(f'v_sub_f32 v{T1+r}, v{T1+r}, v{T2+r}'))
            for r in range(4): ops.append(A(f'v_fma_f32 v{T2+r}, v{T1+r}, s{s2P}, v{S4+o+r} div:2'))
            for r in range(4): ops.append(A(f'v_fma_f32 v{S4+o+r}, v{T1+r}, s{sP3h}, v{S4+o+r} mul:2'))
            for h in (0, 1): ops.append(A(f'v_cvt_pk_bf16_f32 v{O1+2*q+h}, v{T2+2*h}, v{T2+2*h+1}'))
            ops[-2].after = wr.get(n - 2, [])
            ops[-1].mark = ('odd', j, q)
            if n < npark:
                for h in (0, 1): ops.append(A(f'v_accvgpr_write_b32 a{12*j+2*q+h}, v{O1+2*q+h}'))
            else:
                w = stage_write(a128, a64, 0, j, f'v[{O1}:{O1+3}]', f'v[{O1+4}:{O1+5}]', ('Y1', 0))
                for x in w: x.notbefore = g_ok
                if q: ops.append(w[q - 1]); wr.setdefault(n, []).append(w[q - 1])
            if n < npark: ops[-1].mark = ('park', j, q)
    for o in ops:
        if o.cls == 'v': o.odd = True
    return ops

def morder():
    L = []
    if args.ord == 'v':
        for f in range(10):
            L += [(f - s, s, q) for s in range(3) if 0 <= f - s <= 7 for q in range(3)]
    elif args.ord in ('c5', 'c4', 'c6'):
        for j in range(8):
            if j in (0, 7): L += [(j, s, q if s != 1 else 2 - q) for s in range(3) for q in range(3)]
            elif args.ord == 'c6': L += [(j, 0, 0), (j, 1, 0), (j, 2, 0), (j, 2, 1), (j, 1, 1), (j, 0, 1), (j, 0, 2), (j, 1, 2), (j, 2, 2)]
            elif args.ord == 'c5': L += [(j, 0, 0), (j, 1, 0), (j, 1, 1), (j, 0, 1), (j, 2, 1), (j, 0, 2), (j, 1, 2), (j, 2, 2), (j, 2, 0)]
            else: L += [(j, 0, 0), (j, 1, 0), (j, 1, 1), (j, 0, 1), (j, 0, 2), (j, 1, 2), (j, 2, 2), (j, 2, 1), (j, 2, 0)]
    else:
        for j in range(8):
            if j == 0 or (j == 7 and args.ord == 'c2'): L += [(j, s, q) for s in range(2) for q in range(3)]
            else: L += [(j, 0, 0), (j, 1, 0), (j, 1, 1), (j, 0, 1), (j, 0, 2), (j, 1, 2)]
            if j: L += [(j - 1, 2, q) for q in range(3)]
        L += [(7, 2, q) for q in range(3)]
    assert len(L) == 72 and len(set(L)) == 72
    return L
MO = morder()
VF = [min(m for m, (j, s, q) in enumerate(MO) if j + s == f) for f in range(10)]
VL = [max(m for m, (j, s, q) in enumerate(MO) if j + s == f) for f in range(10)]
UF = {(s, q): min(m for m, x in enumerate(MO) if x[1:] == (s, q)) for s in range(3) for q in range(3)}
UL = {(s, q): max(m for m, x in enumerate(MO) if x[1:] == (s, q)) for s in range(3) for q in range(3)}
AF = {(j, q): min(m for m, x in enumerate(MO) if (x[0], x[2]) == (j, q)) for j in range(8) for q in range(3)}
AL = {(j, q): max(m for m, x in enumerate(MO) if (x[0], x[2]) == (j, q)) for j in range(8) for q in range(3)}
MX = []
for j in range(8):
    for q in range(3):
        ks = [(k, s_) for k in range(2) for s_ in range(3)]
        MX += [(j, q, k, s_) for (k, s_) in (ks[::-1] if q == 1 else ks)]
if args.skew:
    MX = [x for x in MX[:36] if x[2] == 0] + [x for x in MX[:36] if x[2] == 1] + MX[36:]
XUF = {(k, s_): min(m for m, x in enumerate(MX) if x[2:] == (k, s_)) for k in range(2) for s_ in range(3)}
XAL = {j: max(m for m, x in enumerate(MX) if x[0] == j) for j in range(8)}
XVF = {(k, f): min(m for m, x in enumerate(MX) if (x[2], x[0] + x[3]) == (k, f)) for k in range(2) for f in range(10)}
XVL = {(k, f): max(m for m, x in enumerate(MX) if (x[2], x[0] + x[3]) == (k, f)) for k in range(2) for f in range(10)}
def mfma_list(t):
    pos, c = sub(t)
    L = []
    if t >= 34:
        for (j, q, k, s) in MX[72 * (t - 34):72 * (t - 33)]:
            d = acc(5, j, q); F = 340 + 10 * k + j + s
            L.append(Op(f'v_mfma_f32_16x16x32_bf16 {d}, {ufrag(34+k,s,q)}, {vfrag(F)}, {d}', 'mfma', None, [('U', 34 + k, s), ('V', F)]))
        return L
    for m, (j, s, q) in enumerate(MO):
        d = acc(pos, j, q)
        cc = '0' if (t < 4 and AF[(j, q)] == m) else d
        L.append(Op(f'v_mfma_f32_16x16x32_bf16 {d}, {ufrag(t,s,q)}, {vfrag(10*t+j+s)}, {cc}', 'mfma', None,
                    [('U', t, s), ('V', 10 * t + j + s)]))
    return L

BARS = [0, 3, 7, 11, 15, 16, 19, 23] + ([24] if args.pl1 else []) + [25, 26, 28, 29, 30, 33, 34, 35]
BG = 62 if args.ord in ('v', 'c2', 'c2f') else 64
B35G = args.b35; B34G = args.b34
NJ35 = args.nj35; NS35 = args.ns35
B0G = args.b0g
AY, AY2, AYR = S3 + 4, S3 + 5, S3 + 6
UG = [int(x) for x in (args.ug or {'v': '57,60,65,69,73,77,81,85,88', 'c2': '60,64,67,72,76,80,84,88,92', 'c2f': '65,67,70,73,76,80,84,87,90', 'c5': '66,69,72,76,80,84,88,92,96', 'c4': '66,69,72,76,80,84,88,92,96', 'c6': '66,69,72,76,80,84,88,93,97'}[args.ord]).split(',')]
XG0 = args.xg
CAP = {None: 2, 'l0': 0, 's': 2, 'r': 1, 'l4': 0, 'l2': 0, 'w8': 0, 'w16': 0, 'st': 2, 'bar': 0}
RES = {'l4': ('vm', 3), 'l2': ('vm', args.xsp), 'st': ('vm', 3), 'w8': ('wr', 2), 'w16': ('wr', 4)}
PEN = {'w8': 4, 'w16': 12, 'st': 12, 'bar': 8}
N = 36 * 72
STG = set(int(x) for x in args.stg.split(',') if x)

class Sched:
    def __init__(s):
        s.head = [None] * N; s.body = [[] for _ in range(N)]
        s.busy = {'vm': [False] * N, 'wr': [False] * N}
        s.resv = True; s.xsub = set(); s.nolds = [False] * N; s.marks = {}
    def tight(s, G):
        t, g = divmod(G, 72)
        if args.uearly and ((t == 35 and g >= 48) or (t == 0 and g <= 20)): return False
        if not args.uearly and ((t == 33 and g >= 59) or (t == 34 and g <= 20)): return False
        return t in s.xsub or t == 33
    def cap(s, g): return CAP[s.head[g].cls if s.head[g] is not None else None]
    def fix(s, g, o):
        g %= N
        assert s.head[g] is None, (g // 72, g % 72, o.cls, s.head[g].cls)
        s.head[g] = o
        if o.cls in RES:
            r, k = RES[o.cls]
            for i in range(k): s.busy[r][(g + i) % N] = True
    def try_place(s, ops, g0, g1, rho, phi, relax=0):
        plan = []; g = g0; n = len(ops)
        hd = {}; bd = {}; bz = set(); pos = {}
        def extra(g): return int((g + 1) * phi) - int(g * phi)
        own_body_at = -1
        for k, o in enumerate(ops):
            g = max(g, g0 + int(rho * k * (g1 - g0) / n))
            for x in getattr(o, 'after', ()): g = max(g, pos[id(x)])
            gsave = g
            if o.notbefore is not None: g = max(g, o.notbefore)
            while True:
                if g > g1: return None
                G = g % N
                h = s.head[G] if s.head[G] is not None else hd.get(G)
                nb = len(s.body[G]) + bd.get(G, 0)
                capn = CAP[h.cls if h is not None else None] + extra(g)
                if o.cls != 'v' and h is None and own_body_at < g and nb <= CAP[o.cls] + extra(g):
                    ok = not (s.resv and o.cls != 'st' and (G % 72) in STG and s.tight(G))
                    if o.cls in ('r', 'w8', 'w16', 'st') and s.nolds[G]: ok = False
                    if o.cls == 'st' and STG and s.tight(G):
                        ok = (G % 72) in STG; r, kk = 'vm', 1
                    elif ok and o.cls in RES:
                        r, kk = RES[o.cls]; kk = max(1, kk - relax)
                        ok = not any(s.busy[r][(g + i) % N] or (r, (g + i) % N) in bz for i in range(kk))
                    if ok:
                        hd[G] = o; plan.append((g, 'h', o))
                        if o.cls in RES:
                            for i in range(kk): bz.add((r, (g + i) % N))
                        break
                if o.cls in ('v', 's') and nb < capn:
                    bd[G] = bd.get(G, 0) + 1; plan.append((g, 'b', o)); own_body_at = g
                    break
                g += 1
            pos[id(o)] = g
            if getattr(o, 'flo', False): g = gsave
        return plan
    def place(s, ops, g0, g1, spread=True):
        tries = [(r / 10, 0.0) for r in range(10 if spread else 0, -1, -1)] + [(0.0, p / 20) for p in range(1, 61)]
        tries = [(r, p, x) for x in (0, 1, 2) for (r, p) in tries]
        for rho, phi, relax in tries:
            plan = s.try_place(ops, g0, g1, rho, phi, relax)
            if plan is not None:
                if relax or phi: print(f'  stream {g0//72}:{g0%72}..{g1//72}:{g1%72} relax {relax} overflow {phi}')
                break
        else: raise Exception(f'cannot place stream in {g0//72}:{g0%72}..{g1//72}:{g1%72}')
        return s.commit(plan)
    def commit(s, plan):
        for g, k, o in plan:
            if k == 'h': s.fix(g, o)
            else: s.body[g % N].append(o)
            if hasattr(o, 'mark'): s.marks[o.mark] = g
            o.at = g
        return max(p[0] for p in plan)
    def alap_heads(s, ops, g1, g0):
        g = g1
        for o in ops[::-1]:
            r, k = RES[o.cls]
            while True:
                assert g >= g0, 'alap'
                G = g % N
                if s.head[G] is None and len(s.body[G]) == 0 and not any(s.busy[r][(g + i) % N] for i in range(k)): break
                g -= 1
            s.fix(g, o); o.at = g; g -= 1
    def late_wait(s, w, lo, hi):
        for g in range(hi, lo - 1, -1):
            if s.head[g % N] is None:
                s.fix(g, w); return
            if isinstance(s.head[g % N], Wait):
                s.head[g % N] = Wait(list(s.head[g % N].tags) + list(w.tags)); return
        s.body[hi % N].append(w)
    def cycles(s, t):
        c = 0
        for g in range(72 * t, 72 * t + 72):
            h = s.head[g]
            c += 16 + (PEN.get(h.cls, 0) if h is not None else 0) + 4 * max(0, len(s.body[g]) - s.cap(g))
        return c

def build_body():
    S = Sched()
    vissue = {}
    for t in range(36):
        b = 72 * t
        if t in BARS:
            gb = {0: B0G, 34: B34G, 35: B35G}.get(t, BG)
            S.fix(b + gb - 1, Grp([Stamp(1 + BARS.index(t)), LgAll()], 's')); S.fix(b + gb, BarOnly())
        for f in range(10):
            if 10 * t + f + 3 >= 340: continue
            gend = VL[f]
            if f == 7: gend = max(gend, BG + 1)
            assert gend not in (BG - 1, BG)
            S.fix(b + gend, vread(10 * t + f + 3)); vissue[(10 * t + f + 3) % 360] = b + gend
    def uburst(b, gaps, tu, lo0):
        for i in range(9): S.fix(b + gaps[i], uload(tu, i // 3, i % 3))
        for i in (0, 3, 6):
            lo = gaps[i - 1] if i else lo0
            g = next(g for g in range(max(lo + 1, gaps[i] - 4), gaps[i]) if S.head[(b + g) % N] is None)
            S.fix(b + g, usoff(tu, i // 3))
    for i in range(9): assert UG[i] >= UL[(i // 3, i % 3)]
    XG = [int(x) for x in args.xug.split(',')]
    for t in range(36):
        if t == (35 if args.uearly else 33): continue
        uburst(72 * t, UG, t + 2 + (t >= 33 and args.uearly), XG[8] if t == 33 else UG[8] - 72)
    uburst(72 * 33, XG, 35, UG[8] - 72)
    def vplace(F, g0, g1):
        g = next(g for g in range(g0, g1 + 1) if S.head[g % N] is None)
        S.fix(g, vread(F)); vissue[F % 360] = g; return g
    g = 72 * 33 + 20
    for f in range(4):
        for k in range(2): g = vplace(340 + 10 * k + f, g + 4, 72 * 33 + 66)
    for f in range(4, 10):
        for k in range(2): vplace(340 + 10 * k + f, 72 * 34 + XVL[(k, f - 4)], 72 * 34 + XVF[(k, f)] - 8)
    g = 72 * 35 + B35G
    for F in (360, 361, 362): g = vplace(F, g + 1, 72 * 35 + 68)
    for t in range(34):
        b = 72 * t
        for s_ in range(3):
            m = min(UF[(s_, q)] for q in range(3))
            S.late_wait(Wait([('U', t, s_)] + (['carry'] if t == 1 else [])), b + m - 3, b + m - 1)
        for f in range(10):
            F = 10 * t + f; hi = b + VF[f] - 1
            iss = vissue[F]
            if iss > hi: iss -= N
            S.late_wait(Wait([('V', F)]), min(hi, max(iss + 4, hi - 6)), hi)
    b = 72 * 34
    for k in range(2):
        for s_ in range(3): S.late_wait(Wait([('U', 34 + k, s_)]), b + XUF[(k, s_)] - 3, b + XUF[(k, s_)] - 1)
        for f in range(10):
            hi = b + XVF[(k, f)] - 1
            S.late_wait(Wait([('V', 340 + 10 * k + f)]), max(vissue[340 + 10 * k + f] + 4, hi - 6), hi)
    wins = [(T, T // 4 + 1, T % 4) for T in range(20)] + [(31 + h, 0, h) for h in range(4)]
    if 'noprod' in EXP: wins = []
    S.xsub = set((T - 2) % 36 for (T, c, h) in wins)
    PF = {}
    for spec in args.pf.split(','):
        if spec: PF.setdefault(int(spec[:-3]), []).append(lambda r, spec=spec: prefetch(r, int(spec[-2]), int(spec[-1]), spec[-3]))
    for (T, c, h) in wins:
        R = rawset(T); t = (T - 2) % 36
        ops = xloads(R, c, h, ('x', T))
        for i, f in enumerate(PF.pop(t, [])): ops = f(R + 10 - i) + ops
        late = args.xg2 and (t >= 29 or t <= args.xl2)
        if late: RES['l2'] = ('vm', args.xsp2)
        gx = S.place(ops, 72 * t + (args.xg2 - 1 if late else XG0 - 4), 72 * t + 59, spread=False)
        RES['l2'] = ('vm', args.xsp)
        if T == 19: g19 = gx
    if not wins: g19 = 72 * 17 + 50
    S.place([A(f's_add_u32 s{sTR}, s{sTR}, 8'), Grp([A(f's_cmp_eq_u32 s{sGEN}, 1'), A(f's_cselect_b32 s{sTR}, 128, s{sTR}'), A(f's_cselect_b32 s{sUW}, {OOB}, 0')], 'l0')] + rows_setup(),
            g19 + 1, 72 * 18 + XG0 - 5)
    HR = RAW + 24
    ops = halo_loads(HR, ('x', 20))
    for i, f in enumerate(PF.pop(18, [])): ops = f(HR + 8 - i) + ops
    S.place(ops, 72 * 18 + XG0 - 4, 72 * 18 + 59, spread=False)
    for t, fs in PF.items():
        assert len(fs) == 1 and 19 <= t <= 23
        S.place(fs[0](RAW + (t & 1) if t < 23 else TMP + 4), 72 * t + XG0 - 4, 72 * t + 56, spread=False)
    a128, a64, arb = TMP, TMP + 1, TMP + 2
    aq = lambda r: f'a[{r}:{r+3}]'
    vq = lambda r: f'v[{r}:{r+3}]'
    G = lambda x: int(round(72 * x))
    gk = [(g8, k) for g8 in range(4) for k in range(3)]
    kg = [(g8, k) for k in range(3) for g8 in range(4)]
    SP = [float(x) for x in args.stp.split(',')]
    def stores(chunks, bufs, reads, sbase, rowoff, lab, g0, g1):
        ops = []
        for (g8, k), buf, rd in zip(chunks, bufs, reads):
            st = rb_store(buf, sbase, rowoff, g8, k, lab); st[1].notbefore = rd.at + 6
            ops += [st[0], Wait([(lab[0], g8, k)]), st[1]]; ops[-2].notbefore = rd.at + 5
        S.place(ops, g0, g1); return [o for o in ops if isinstance(o, Op) and o.cls == 'st']
    lab = ('Y2', 0)
    b2 = [vq(RAW + 20 + 4 * n) for n in range(4)] + [vq(RAW + 20), vq(RAW + 24)] + [aq(x) for x in (84, 88, 92, 96, 100, 104)]
    if not PL1: b2[6:] = [aq(96 + 4 * n) for n in range(6)]
    r2 = [rb_read(arb, 0, b2[n], *kg[n], lab) for n in range(12)]
    S.place(r2[:4], G(24), G(24) + 14, spread=False)
    d2 = (SP[1] - SP[0]) / 3
    s2 = stores(kg[:4], b2[:4], r2[:4], sOUT, 2 * ROWB, lab, G(SP[0]), G(SP[0] + d2))
    S.place(r2[4:6], s2[1].at + 2, s2[1].at + 20, spread=False)
    S.place(r2[6:], G(25) + 20, G(25) + 59)
    stores(kg[4:], b2[4:], r2[4:], sOUT, 2 * ROWB, lab, G(SP[0] + d2) + 1, G(SP[1]))
    lab = ('Y1', 0)
    pk = []
    for j in range(args.npark): pk += stage_write(a128, a64, 0, j, f'a[{12*j}:{12*j+3}]', f'a[{12*j+4}:{12*j+5}]', lab)
    S.place(pk, G(25) + BG + 2, G(26) + 30)
    b1 = [aq((108 if PL1 else 120) + 4 * n) for n in range(12)]
    r1 = [rb_read(arb if n < 8 else AYR, 0, b1[n], *kg[n], lab) for n in range(12)]
    S.place(r1[:4], G(26) + BG + 2, G(27) + 30); S.place(r1[4:8], G(28) + BG + 2, G(29) + 20); S.place(r1[8:], G(29) + BG + 2, G(30) + 30)
    stores(kg, b1, r1, sOUT, 1 * ROWB, lab, G(SP[1]) + 1, G(SP[2]))
    lab = ('Y0', 0)
    cs = cvt_stage(S3, AY, AY2, Y0U, lab, nb=lambda j: G(29) + max(AL[(j, q)] for q in range(3)) + 6,
                   after0=[A(f'v_mov_b32 v{AY}, v{a128}'), A(f'v_mov_b32 v{AY2}, v{a64}'), A(f'v_mov_b32 v{AYR}, v{arb}')])
    S.place(cs, G(29) + 20, G(30) + 59, spread=False)
    b0 = [aq(4 * n) for n in range(12)]
    r0 = [rb_read(AYR, Y0U, b0[n], *gk[n], lab) for n in range(12)]
    S.place(r0, G(30) + BG + 2, G(33) + 18)
    stores(gk, b0, r0, sOUT, 0, lab, G(SP[2]) + 1, G(SP[3]))
    nb3 = lambda j: G(34) + XAL[j] + (8 if j > 1 or not args.skew else 11)
    lab = ('Y3', 0)
    S.place(cvt_stage(S4, AY, AY2, Y3U, lab, js=range(3), nb=nb3, q2last=True), G(34) + 10, G(34) + B34G - 2, spread=False)
    S.place(cvt_stage(S4, AY, AY2, Y3U, lab, js=range(3, 6), nb=nb3, q2last=True), G(34) + B34G + 1, G(35) + B35G - 2, spread=False)
    S.place(cvt_stage(S4, AY, AY2, Y3U, lab, js=range(6, NJ35), nb=nb3, q2last=True), G(35) + B35G + 1, G(35) + 71, spread=False)
    b3 = [vq(S4 + 4 * n) for n in range(12)]
    r3 = [rb_read(AYR, Y3U, b3[n], *kg[n], lab) for n in range(8)]
    S.place(r3[:4], G(34) + B34G + 1, G(35) + 30, spread=False)
    S.place(r3[4:], G(35) + B35G + 1, G(35) + 70, spread=False)
    stores(kg[:NS35], b3[:NS35], r3[:NS35], sOUT, 3 * ROWB, lab, G(SP[3]) + 1, G(35) + 71)
    lab = ('Y3', -1)
    ops = []
    for n in range(NS35, 8): ops += rb_store(b3[n], sOUT3, 0, *kg[n], lab)
    g = S.place(ops, 0, 21, spread=False) if ops else 0
    S.place(cvt_stage(S4, AY, AY2, Y3U, lab, js=range(NJ35, 8), nb=lambda j: 7, q2last=True), 0, B0G - 2, spread=False)
    r3 = [rb_read(AYR, Y3U, b3[n], *kg[n], lab) for n in range(8, 12)]
    S.place(r3, B0G + 1, 60)
    stores(kg[8:], b3[8:], r3, sOUT3, 0, lab, max(g + 1, B0G + 6), G(args.y3end))
    S.resv = False
    S.place(stage_addr(a128, a64, TMP + 3) + [A(f'v_add_u32 v{arb}, s{sRB}, v{vU}')], G(21) + 2, G(21) + 20, spread=False)
    et = [(j, q) for j in PL0 + [x for x in range(8) if x not in PL0 + PL1] for q in range(3)][:max(0, args.nearly - 3 * len(PL1))]
    et += [(j, q) for j in PL1 for q in range(3)]
    ops = early_ab(et, lambda j, q: G(21) + AL[(j, q)] + 6)
    for j in PL0: ops += even_plain(j, RAW + 12, RAW + 16, OA, lambda j, q: G(23) + AL[(j, q)] + 6)
    if ops:
        ge = S.place(ops, G(21) + 10, G(23) + 71, spread=False); print(f'  early end {ge/72:.2f}')
    g0 = G(24)
    for j in PL1:
        w = stage_write(a128, a64, 0, j, f'v[{RAW}:{RAW+3}]', f'v[{RAW+4}:{RAW+5}]', ('Y2', 0))
        ep = even_plain(j, RAW + 12, RAW + 16, RAW)
        S.place(ep + w[::-1], g0, G(24) + 59, spread=False)
        for q in range(3): assert S.marks[('y0', j, q)] < G(24) + AF[(j, q)] - 1
        g0 = ep[-1].at
    S.place(odd_part(a128, a64, args.npark, G(25) + BG + 1, list(range(8))), g0, G(29) + 59, spread=False)
    M = S.marks
    print('  odd progress', ' '.join(f'{M[("odd",j,2)]/72:.2f}' for j in range(8)))
    owner = lambda buf: divmod((int(buf[2:buf.index(':')]) - 96) // 4, 3)
    for buf, rd in list(zip(b2, r2)) + list(zip(b1, r1)):
        if buf[0] == 'a' and int(buf[2:buf.index(':')]) >= 96: assert M[('odd',) + owner(buf)] < rd.at, buf
    for j in range(args.npark): assert M[('park', j, 2)] < min(pk[2 * j].at, pk[2 * j + 1].at)
    def group(run, g0):
        for p in range(0, 80):
            phi = p / 40
            snap = (list(S.head), [list(x) for x in S.body], {k: list(v) for k, v in S.busy.items()})
            g = g0; ok = True
            for (T, c, h) in run:
                R = rawset(T)
                ad, w = vwrites(R, c, h, int(T > 30), True)
                if T: g = max(g, 72 * (T - 1) + (args.xw if T < 30 else args.xw2))
                if T == 0: w[1].notbefore = B0G + 1
                if T == 31: w[1].notbefore = G(30) + BG + 1
                if T == 16: w[4].notbefore = G(16) + BG + 1
                dl = 72 * (T + 1) + XG0 - 5
                if h == 3 and T < 30: dl = 72 * T + 59
                if T in (32, 33): dl += 72
                if T == 34: dl = G(35) + B35G - 2
                rest = [w[pos] for pos in (2, 3, 0, 5, 4)] + (halo_copy(c, R, int(T > 30)) if h == 1 else [])
                for ops, keep in ((transform(R, ('x', T)) + [ad, w[1]], True), ([A(f'v_lshrrev_b32 v{R + 2 * SLOT[1]}, 15, v{vXW}')] + rest, False)):
                    plan = S.try_place(ops, g + (not keep), dl, 0.0, phi if keep else 0.0)
                    if plan is None: ok = False; break
                    e_ = S.commit(plan)
                    if keep: g = e_
                if not ok: break
            if ok:
                if phi: print(f'  windows {run[0][0]}.. overflow {phi}')
                return g
            S.head, S.body, S.busy = snap
        raise Exception('group')
    if wins:
        g = 0
        for k in range(5): g = group(wins[4 * k:4 * k + 4], g)
        S.place(transform(HR, ('x', 20)) + halo_writes(HR, 1), max(g, G(19) + 50), G(21) + 1, spread=False)
        g = G(args.w31)
        for k in range(20, 24): g = group(wins[k:k + 1], g)
    if 'map' in EXP:
        sym = {'l4': 'U', 'l2': 'x', 'st': 'S', 'w8': 'w', 'w16': 'W', 'r': 'r', 'bar': 'B', 's': '.', 'l0': ':'}
        for t in range(36):
            print(f'{t:2d} ' + ''.join((sym[S.head[g].cls] if S.head[g] is not None else ' ') for g in range(72 * t, 72 * t + 72)) + '|')
            print('   ' + ''.join(str(len(S.body[g])) if S.body[g] else ' ' for g in range(72 * t, 72 * t + 72)) + '|')
    return S

def emit_body(E, S):
    E.nsince = 0
    for t in range(36):
        if t == 24 and 'noburst' not in EXP: burst(E)
        ml = mfma_list(t)
        if getattr(E, 'labels', False): E.raw(f'sub{t}:')
        for m in range(72):
            E.op(ml[m])
            g = 72 * t + m
            if args.fine >= 0 and m == 0: E.e(('s_memrealtime' if args.rt else 's_memtime') + ' s[98:99]')
            if args.fine >= 0 and m == 40:
                E.e(f's_cmp_eq_u32 s{sGEN}, {args.fine}'); E.e(f's_cselect_b32 s{60+t}, s98, s{60+t}')
            if S.head[g] is not None: E.op(S.head[g])
            for o in S.body[g]: E.op(o)

def srd(E, d, b, n):
    E.e(f's_mov_b32 s{d}, s{b}'); E.e(f's_and_b32 s{d+1}, s{b+1}, 0xffff')
    E.e(f's_mov_b32 s{d+2}, {n}'); E.e(f's_mov_b32 s{d+3}, 0x20000')

NWT = 54
WPART = 12288 if 'fullline' in EXP else 1536
PADS = 'nopads' not in EXP
def PS(E, k):
    if args.pro:
        E.e('s_memtime s[94:95]'); E.e('s_waitcnt lgkmcnt(0)'); E.e('s_sub_u32 s94, s94, s96'); E.e(f'v_writelane_b32 v90, s94, {k}')
def wt_task(E):
    wt_addr(E); wt_loads(E); E.e('s_waitcnt vmcnt(0)'); wt_comp(E)
def wt_addr(E):
    e = E.e
    e('s_mul_i32 s73, s70, 43691'); e('s_lshr_b32 s73, s73, 17')
    e('s_mul_i32 s74, s73, 3'); e('s_sub_u32 s74, s70, s74')
    e('s_mul_i32 s75, s73, 43691'); e('s_lshr_b32 s75, s75, 17')
    e('s_mul_i32 s76, s75, 3'); e('s_sub_u32 s76, s73, s76')
    e('v_and_b32 v101, 15, v2'); e('v_lshrrev_b32 v102, 4, v2'); e('v_and_b32 v103, 12, v101')
    e('s_lshl_b32 s78, s74, 2'); e('s_cmp_lt_u32 s74, 2'); e('s_cselect_b32 s77, 1, 0'); e('s_cselect_b32 s78, s78, 32')
    e('v_mul_u32_u24 v103, s77, v103'); e('v_add_u32 v103, v103, v101'); e('v_add_u32 v103, s78, v103')
    e(f'v_lshl_add_u32 v103, v103, 1, s{sW96}')
    e('v_mul_u32_u24 v104, 3072, v102'); e('v_add_u32 v103, v103, v104')
    e('s_mul_i32 s79, s76, 73728'); e('s_mul_i32 s80, s75, 12288'); e('s_add_u32 s79, s79, s80')
    e('s_add_u32 s80, s79, 221184'); e('s_add_u32 s81, s79, 442368')
def wt_loads(E):
    e = E.e
    for r in range(3):
        for k in range(8):
            e(f'buffer_load_ushort v{110+r*8+k}, v103, s[60:63], s{79+r} offen offset:{k*384}')
    e('s_mul_i32 s82, s76, 3072'); e('s_lshl_b32 s83, s74, 10'); e('s_add_u32 s82, s82, s83')
    e('s_mul_i32 s83, s75, 36864'); e('s_lshl_b32 s84, s83, 2'); e('s_add_u32 s83, s83, s82'); e('s_add_u32 s84, s84, s82')
def wt_comp(E):
    e = E.e
    for i in range(24): e(f'v_lshlrev_b32 v{110+i}, 16, v{110+i}')
    f1 = 2 * P * P * (P * P - Q * Q); f3 = 2 * Q * Q * (Q * Q - P * P)
    al, be = Fr(1), Q ** 2
    def put(pos, src):
        O = 152 + 4 * pos
        for k in range(4): e(f'v_cvt_pk_bf16_f32 v{O+k}, v{src+2*k}, v{src+2*k+1}')
        if pos == 0: e(f's_add_u32 s85, s83, {24*36864}')
        elif pos == 5: e(f's_add_u32 s85, s83, {30*36864}')
        else: e(f's_add_u32 s85, s84, {(pos-1)*36864}')
        e(f'buffer_store_dwordx4 v[{O}:{O+3}], v{vU}, s[8:11], s85 offen sc1')
    for (pos, g, z) in ((1, al / f1, P), (3, be / f3, Q)):
        for k in range(8):
            e(f'v_mul_f32 v{136+k}, {f32(g)}, v{110+k}'); e(f'v_fmac_f32 v{136+k}, {f32(g*z*z)}, v{126+k}')
            e(f'v_fmamk_f32 v{144+k}, v{118+k}, {f32(g*z)}, v{136+k}'); e(f'v_fmac_f32 v{136+k}, {f32(-g*z)}, v{118+k}')
        put(pos, 144); put(pos + 1, 136)
    put(0, 110); put(5, 126)

KN = 'standalone__winograd__vision_kernel'
def main_kernel(E):
    e = E.e
    E.raw(f""".globl {KN}
.p2align 8
.type {KN},@function
{KN}:""")
    i0 = len(E.L); E.lds = verify.Lds()
    e('s_cmp_ge_u32 s2, 256'); e('s_cbranch_scc1 main_done')
    e('s_load_dwordx4 s[4:7], s[0:1], 0'); e('s_load_dwordx4 s[12:15], s[0:1], 16'); e('s_load_dwordx2 s[8:9], s[0:1], 32')
    if STAMP: e(f'{"s_memrealtime" if args.rt else "s_memtime"} s[96:97]'); e('s_memrealtime s[98:99]')
    if args.fine >= 0: e(('s_memrealtime' if args.rt else 's_memtime') + ' s[96:97]'); e('s_memrealtime s[98:99]'); e('s_waitcnt lgkmcnt(0)'); e('s_mov_b32 s97, s98')
    if args.span: e('s_memrealtime s[98:99]')
    if 'nocpf' not in EXP:
        e('s_getpc_b64 s[92:93]'); E.raw('pcref:')
        e('v_and_b32 v70, 3, v0'); e('v_lshrrev_b32 v71, 6, v0'); e('v_lshl_add_u32 v70, v70, 7, v71')
        e('s_lshr_b32 s94, s2, 3'); e('s_lshl_b32 s94, s94, 2'); e('v_add_lshl_u32 v70, v70, s94, 7')
        e('v_min_u32 v70, code_end-pcref-4, v70')
        e('v_add_co_u32 v72, vcc, s92, v70'); e('v_mov_b32 v73, s93'); e('s_nop 0'); e('v_addc_co_u32 v73, vcc, 0, v73, vcc')
        E.op(VM('global_load_dword v76, v[72:73], off', 'c'))
    e('v_lshrrev_b32 v1, 6, v0'); e('v_and_b32 v2, 63, v0')
    e(f'v_readfirstlane_b32 s{sW}, v1')
    e(f'v_lshlrev_b32 v{vU}, 4, v2'); e('v_mov_b32 v98, 0')
    e('v_lshrrev_b32 v3, 3, v2'); e('v_and_b32 v4, 7, v2')
    e('v_mul_u32_u24 v5, 3072, v3'); e(f'v_lshl_add_u32 v{vXW}, v4, 3, v5')
    if 'fullline' in EXP: e('v_lshrrev_b32 v5, 4, v2'); e('v_mul_u32_u24 v5, 3072, v5'); e('v_and_b32 v6, 15, v2'); e(f'v_lshl_add_u32 v{vXW}, v6, 3, v5')
    e(f's_lshr_b32 s{sT2}, s2, 3'); e(f's_and_b32 s{sCB}, s{sT2}, 3'); e(f's_lshr_b32 s{sT2}, s{sT2}, 2')
    e(f's_and_b32 s{sTR}, s2, 7'); e(f's_lshl_b32 s{sTR}, s{sTR}, 4'); e(f's_add_u32 s{sTR}, s{sTR}, s{sT2}')
    e(f's_and_b32 s90, s{sW}, 1'); e(f's_lshr_b32 s91, s{sW}, 1')
    e(f's_mul_i32 s{sH}, s90, 24576'); e(f's_mul_i32 s{sT3}, s91, {WPART}'); e(f's_add_u32 s{sH}, s{sH}, s{sT3}')
    e(f's_mul_i32 s{sPFD}, s{sW}, {ROWB}'); e(f's_sub_u32 s{sPFD}, s{sPFD}, s{sH}')
    e(f's_mul_i32 s{sWP}, s{sCB}, 49152'); e(f's_add_u32 s{sWP}, s{sWP}, s{sH}')
    E.op(rows_setup())
    e(f's_mul_i32 s{sW96}, s{sW}, 96'); e(f's_mul_i32 s{sT2}, s{sW}, 9216')
    e('s_mov_b32 s70, s2'); e(f'v_mov_b32 v80, v{vXW}')
    wt_addr(E)
    PR = [8 + 12 * i for i in range(5)]
    poll = lambda: E.op(VM('buffer_load_dword v97, v98, s[64:67], 0 offen offset:128 sc1', 'poll'))
    def xl(h):
        for r in range(6):
            E.op(VM(f'buffer_load_dwordx2 v[{PR[h]+2*r}:{PR[h]+2*r+1}], v80, s[4:7], s{sROW+r} offen offset:{h*384}', ('p', h)))
    nwt = 0 if "forcefb" in EXP else NWT
    e('s_waitcnt lgkmcnt(0)')
    if args.pro: e('v_mov_b32 v90, 0')
    PS(E, 0)
    srd(E, 60, 6, WB)
    e('s_and_b32 s5, s5, 0xffff'); e(f's_mov_b32 s6, {XB}'); e('s_mov_b32 s7, 0x20000')
    e(f's_add_u32 s8, s8, s{sT2}'); e('s_addc_u32 s9, s9, 0')
    e('s_and_b32 s9, s9, 0xffff'); e(f's_mov_b32 s10, {UB-3*9216}'); e('s_mov_b32 s11, 0x20000')
    srd(E, 64, 14, 256); e('s_mov_b64 s[68:69], s[14:15]')
    if args.span:
        e(f's_cmp_lg_u32 s{sW}, 0'); e('s_cbranch_scc1 sp_skip')
        e('s_not_b32 s99, s98'); e('s_atomic_umax s98, s[68:69], 64'); e('s_atomic_umax s99, s[68:69], 68')
        E.raw('sp_skip:')
    if 'tlb' in EXP:
        e(f's_mov_b32 s10, {UB+4096}'); e(f's_mov_b32 s88, {UB}')
        e('buffer_load_dword v78, v98, s[8:11], s88 offen'); e('buffer_load_dword v79, v98, s[64:67], 0 offen offset:128 sc1')
    e(f's_cmp_lt_u32 s2, {nwt}'); e('s_cbranch_scc1 wt_path')
    E.vm = []
    if args.xdelay: e(f's_sleep {args.xdelay}')
    def helper():
        e('s_lshr_b32 s73, s2, 3'); e('s_sub_u32 s73, s73, 7'); e('s_lshl_b32 s74, s73, 2'); e(f's_add_u32 s74, s74, s{sW}')
        e('s_and_b32 s75, s2, 7'); e('s_lshl_b32 s75, s75, 9'); e('s_add_u32 s74, s74, s75'); e('s_mul_i32 s74, s74, 24576')
        e('s_cmp_lt_u32 s73, 18'); e(f's_cselect_b32 s74, s74, {OOB}'); e(f'v_mul_u32_u24 v81, 24, v{vU}')
        e('buffer_load_dword v81, v81, s[4:7], s74 offen')
    if args.help_at == 0: helper()
    xl(0)
    if args.help_at == 1: helper()
    xl(1)
    if args.help_at == 2: helper()
    e('s_branch wt_join')
    E.raw('wt_path:')
    vm0 = list(E.vm)
    wt_loads(E); PS(E, 1)
    e('s_waitcnt vmcnt(0)'); PS(E, 2)
    wt_comp(E); PS(E, 3); xl(0)
    E.raw('wt_join:')
    E.vm = list(vm0)
    PS(E, 5)
    e('s_and_b32 s13, s13, 0xffff'); e(f's_mov_b32 s14, {XB}'); e('s_mov_b32 s15, 0x20000')
    e('v_lshrrev_b32 v5, 4, v2'); e(f'v_mul_u32_u24 v6, {PLS}, v5'); e('v_lshrrev_b32 v5, 1, v5')
    e('v_lshl_add_u32 v6, v5, 6, v6'); e(f'v_and_b32 v5, 0xf0, v{vU}'); e(f'v_add_u32 v{vR}, v6, v5')
    e('v_lshrrev_b32 v6, 1, v4'); e(f'v_mul_u32_u24 v7, {PLS}, v6'); e('v_lshrrev_b32 v6, 1, v6'); e('v_lshl_add_u32 v7, v6, 6, v7')
    e('v_and_b32 v6, 1, v2'); e('v_lshl_add_u32 v7, v6, 3, v7'); e('v_lshl_add_u32 v7, v3, 4, v7')
    e(f's_lshl_b32 s{sT2}, s90, 7'); e(f's_mul_i32 s{sT3}, s91, 1056'); e(f's_add_u32 s{sT2}, s{sT2}, s{sT3}')
    e(f'v_add_u32 v7, s{sT2}, v7'); e(f'v_lshl_or_b32 v{vXW}, v7, 15, v{vXW}')
    e(f's_mul_i32 s{sRB}, s{sW}, {PLS}'); e(f's_lshl_b32 s{sT3}, s91, 6'); e(f's_add_u32 s{sRB}, s{sRB}, s{sT3}')
    e(f's_lshl_b32 s{sT3}, s90, 4'); e(f's_add_u32 s{sRB}, s{sRB}, s{sT3}')
    e(f's_mul_i32 s{sOUT}, s{sTR}, {4*ROWB}'); e(f's_mul_i32 s{sT3}, s{sCB}, 49152'); e(f's_add_u32 s{sOUT}, s{sOUT}, s{sT3}')
    e(f's_mul_i32 s{sT3}, s{sW}, 12288'); e(f's_add_u32 s{sOUT}, s{sOUT}, s{sT3}')
    e(f's_mov_b32 s{sOUT3}, {OOB}'); e(f's_mov_b32 s{sGEN}, 0'); e(f's_mov_b32 s{sUW}, 0')
    e(f's_lshl_b32 s{sT3}, s{sW}, 4'); e(f's_mov_b32 s{sEXM}, 0xfff'); e(f's_mov_b32 s{sEXM+1}, 0'); e(f's_lshl_b64 s[{sEXM}:{sEXM+1}], s[{sEXM}:{sEXM+1}], s{sT3}')
    e('s_mov_b32 s58, 0x0fff0fff'); e('s_mov_b32 s59, 0')
    for r, v in ((sNSIG, -SIG), (sNP2, -P * P), (sIK, 1 / KAP), (sP, P), (sNP, -P), (sNSK, -SIG / KAP), (sK, KAP),
                 (sP2, P * P), (sQT, 1 / (Q * Q)), (s2P, 2 * P), (sP3h, P ** 3 / 2)):
        e(f's_mov_b32 s{r}, {f32(v)}')
    e(f's_mov_b32 s{sMASK}, 0xffff0000')
    E.op(stage_addr(AY, AY2, AYR)); e(f'v_add_u32 v{AYR}, s{sRB}, v{vU}')
    if PADS:
        for r in [RAW, RAW + 1, RAW + 11, RAW + 23, RAW + 32, RAW + 35, TMP + 4]: e(f'v_mov_b32 v{r}, 0')
        e(f's_mov_b32 s{sT0}, 0')
    e(f's_cmp_gt_u32 s{sCB}, 0'); e(f's_cselect_b32 s{sT3}, 384, 0'); e(f's_cselect_b32 s{sT4+1}, 0, {OOB}')
    e(f's_add_u32 s{sH}, s{sH}, s{sT3}'); e(f's_add_u32 s{sT4}, s{sT3}, 49152')
    e(f's_cmp_eq_u32 s{sCB}, 3'); e(f's_cselect_b32 s{sT4}, {OOB}, s{sT4}')
    e('s_mov_b32 s56, 0xffff0000'); e('s_mov_b32 s57, 0')
    e(f's_cmp_ge_u32 s2, {nwt}'); e('s_cbranch_scc1 pub_skip')
    if PADS: e('s_branch do_warm'); E.raw('wt_ret:')
    e('s_mov_b32 s87, 1'); e(f's_cmp_lg_u32 s{sW}, 0')
    e(f's_waitcnt vmcnt({6 if "ack6" in EXP else 0})'); e('s_barrier'); e('s_cbranch_scc1 wt_pub')
    e('s_atomic_add s87, s[68:69], 0 glc'); e('s_waitcnt lgkmcnt(0)'); PS(E, 4)
    e(f's_cmp_lg_u32 s87, {NWT-1}'); e('s_cbranch_scc1 wt_pub')
    e('s_atomic_add s87, s[68:69], 128')
    E.raw('wt_pub:')
    xl(1); E.vm = list(vm0)
    E.raw('pub_skip:')
    PS(E, 6)
    E.op(halo_loads(PR[4], 'ph'))
    for h in range(2, 4): xl(h)
    PS(E, 7)
    NU1 = 9 if args.uearly else sum(g < 72 for g in UG)
    def uloads0():
        for i in range(9):
            if i % 3 == 0: E.op(usoff(0, i // 3))
            E.op(uload(0, i // 3, i % 3))
        for i in range(NU1):
            if i % 3 == 0: E.op(usoff(1, i // 3))
            E.op(uload(1, i // 3, i % 3))
        if NU1 % 3 == 0 and NU1 < 9: E.op(usoff(1, NU1 // 3))
    EARLY = args.early
    for h in range(4):
        if h == EARLY - 1: poll()
        if args.x1at == h:
            for T in range(2): E.op(xloads(RAW + 12 * T, 1, T, ('x', T)))
        if h == EARLY:
            assert args.x1at <= h
            E.op(Wait(['poll'])); e('v_readfirstlane_b32 s72, v97'); e('s_nop 0'); e('s_cmp_eq_u32 s72, 0'); e('s_cbranch_scc1 not_yet')
            vm1 = list(E.vm); uloads0(); E.vm = vm1
            E.raw('not_yet:')
        E.op(transform_pk(PR[h], ('p', h), 176))
        ad, w = vwrites(PR[h], 0, h)
        E.op(ad)
        for pos in range(6): E.op(w[pos])
        PS(E, 8 + h)
        if h == args.haloat: E.op(transform_pk(PR[4], 'ph', 176)); E.op(halo_writes(PR[4], 0, True))
    PS(E, 12)
    if EARLY < 4: e('s_cmp_lg_u32 s72, 0'); e('s_cbranch_scc1 no_poll')
    poll()
    E.raw('no_poll:')
    if PADS:
        e(f's_cmp_lt_u32 s2, {nwt}'); e('s_cbranch_scc1 warm_done')
        E.raw('do_warm:')
        e('s_mov_b64 vcc, -1')
        for k in range(3): e(f's_cmp_eq_u32 s{sW}, {k}'); e(f's_cbranch_scc1 pad{k}')
        e('s_branch pad3')
        E.raw('warm_ret:'); e('s_mov_b64 vcc, 0')
        e(f's_cmp_lt_u32 s2, {nwt}'); e('s_cbranch_scc1 wt_ret')
        E.raw('warm_done:')
    e('s_mov_b32 s86, 0')
    if EARLY < 4: e('s_cmp_lg_u32 s72, 0'); e('s_cbranch_scc1 u_done')
    E.op(Wait(['poll']))
    PS(E, 13)
    E.raw('poll_loop:')
    e('v_readfirstlane_b32 s87, v97'); e('s_add_u32 s86, s86, 1')
    e('s_cmp_lg_u32 s87, 0'); e('s_cbranch_scc1 u_ready')
    e('buffer_load_dword v97, v98, s[64:67], 0 offen offset:128 sc1')
    e('s_cmp_lt_u32 s86, 512'); e('s_waitcnt vmcnt(0)'); e('s_cbranch_scc1 poll_loop')
    e('s_mov_b32 s70, 0'); e('s_branch wt_loop')
    E.raw('u_ready:')
    PS(E, 14)
    uloads0()
    E.raw('u_done:')
    if args.pro: e('v_writelane_b32 v90, s86, 17')
    E.op(Bar())
    for F in range(3): E.op(vread(F))
    E.op(Stamp(0))
    for i in range(args.idle): e('s_sleep 37')
    PS(E, 15)
    pro_vm = list(E.vm); iw = len(E.L); e('s_waitcnt vmcnt(0) lgkmcnt(0)')
    if args.pro:
        PS(E, 16)
        e('s_mov_b32 s10, 0x400000'); e('s_lshl_b32 s94, s2, 10'); e('s_add_u32 s94, s94, 0x300000'); e(f's_mul_i32 s95, s{sW}, {9216-256}'); e('s_sub_u32 s94, s94, s95')
        e(f'v_lshrrev_b32 v91, 2, v{vU}'); e('buffer_store_dword v90, v91, s[8:11], s94 offen'); e('s_waitcnt vmcnt(0)'); e(f's_mov_b32 s10, {UB-3*9216}')
    S = build_body()
    E2 = Emit(); emit_body(E2, S)
    E.vm = list(E2.vm); E.lg = list(E2.lg); st = (list(E.vm), list(E.lg)); E.late = 0
    k = NU1; assert all(t[:2] == ('U', 1) for t in pro_vm[-k:])
    E.L[iw] = f'    s_waitcnt vmcnt({k}) lgkmcnt(0)'
    print('entry vmcnt', k)
    lds = E.lds; E.lds = None
    if PADS: e('s_branch blk_loop'); E.raw('.p2align 12')
    else: E.raw('.p2align 6')
    E.raw('blk_loop:'); i1 = len(E.L)
    E.labels = True
    emit_body(E, S)
    print('late (unplanned) waits in body:', E.late)
    assert (E.vm, E.lg) == st, (E.vm, st)
    e(f's_add_u32 s{sOUT3}, s{sOUT}, {3*ROWB}'); e(f's_add_u32 s{sOUT}, s{sOUT}, {32*ROWB}')
    e(f's_add_u32 s{sGEN}, s{sGEN}, 1'); e(f's_cmp_lt_u32 s{sGEN}, 2'); e('s_cbranch_scc1 blk_loop')
    def tail(E):
        SPOL['Y3'] = SPOL['T']
        lab = ('Y3', -1)
        kg = [(g8, k) for k in range(3) for g8 in range(4)]
        buf = lambda n: f'v[{S3+16+4*(n-4)}:{S3+16+4*(n-4)+3}]'
        for n in range(NS35, 8): E.op(rb_store(f'v[{S4+4*n}:{S4+4*n+3}]', sOUT3, 0, *kg[n], lab))
        if NS35 == 8: E.e('s_nop 3')
        E.op(cvt_stage(S4, AY, AY2, Y3U, lab, js=range(NJ35, 8), q2last=True))
        E.op(Bar()); lo = 8
        for n in range(lo, 12): E.op(rb_read(AYR, Y3U, buf(n), *kg[n], lab))
        for n in range(lo, 12): E.op(rb_store(buf(n), sOUT3, 0, *kg[n], lab))
    i2 = len(E.L)
    V = Emit(); V.lds = lds; V.vm = list(E.vm); V.lg = list(E.lg)
    V.blk = 0; emit_body(V, S); V.blk = 1; emit_body(V, S); V.blk = 2; tail(V)
    tail(E)
    errs = verify.check(E.L[i0:i2] + E.L[i1:]) + lds.errs
    for x in errs[:30]: print('VERIFY:', x)
    print('verify errors:', len(errs))
    if STAMP:
        e('s_waitcnt vmcnt(0)')
        e(f'{"s_memrealtime" if args.rt else "s_memtime"} s[92:93]'); e('s_memrealtime s[94:95]')
        e('s_load_dwordx2 s[16:17], s[0:1], 24'); e('s_waitcnt lgkmcnt(0)')
        e(f's_cmp_lg_u32 s2, {args.fwg}'); e('s_cbranch_scc1 main_done'); e(f's_cmp_lg_u32 s{sW}, 0'); e('s_cbranch_scc1 main_done')
        srd(E, 4, 16, 256)
        e('v_mov_b32 v1, 0')
        n = len(BARS) + 1
        def put(k):
            e(f'v_mov_b32 v2, s{sT0}'); e(f'buffer_store_dword v2, v1, s[4:7], 0 offen offset:{4*k}')
            if k == args.probe: e(f's_mov_b32 s{sT1}, s{sT0}')
        e(f's_sub_u32 s{sT0}, s92, s96'); put(0)
        e(f's_sub_u32 s{sT0}, s94, s98'); put(1)
        e(f's_sub_u32 s{sT0}, s60, s96'); put(2)
        e(f's_sub_u32 s{sT0}, s62, s60'); put(3)
        for k in range(2, n):
            e(f's_sub_u32 s{sT0}, s{60+2*k}, s{60+2*(k-1)}'); put(2 + k)
        e(f's_sub_u32 s{sT0}, s92, s{60+2*(n-1)}'); put(2 + n)
        if args.probe >= 0:
            e(f's_min_u32 s{sT1}, s{sT1}, 400000')
            if args.rt: e(f's_min_u32 s{sT1}, s{sT1}, 20000'); e(f's_lshl_b32 s{sT1}, s{sT1}, 3')
            else: e(f's_lshr_b32 s{sT1}, s{sT1}, 2'); e(f's_mul_i32 s{sT1}, s{sT1}, 1638'); e(f's_lshr_b32 s{sT1}, s{sT1}, 10')
            E.raw('spin:'); e('s_memrealtime s[90:91]'); e('s_waitcnt lgkmcnt(0)'); e('s_sub_u32 s90, s90, s94'); e(f's_cmp_lt_u32 s90, s{sT1}'); e('s_cbranch_scc1 spin')
    if args.fine >= 0:
        e('s_waitcnt vmcnt(0)'); e(('s_memrealtime' if args.rt else 's_memtime') + ' s[98:99]'); e('s_memrealtime s[56:57]')
        e('s_load_dwordx2 s[16:17], s[0:1], 32'); e('s_waitcnt lgkmcnt(0)')
        e(f's_cmp_lg_u32 s{sW}, 0'); e('s_cbranch_scc1 main_done')
        srd(E, 4, 16, 0x400000)
        e('s_lshl_b32 s16, s2, 8'); e('s_add_u32 s16, s16, 0x200000'); e('v_mov_b32 v1, 0')
        for k in range(41):
            if k == 0: e(f's_sub_u32 s{sT0}, s60, s96')
            elif k < 36: e(f's_sub_u32 s{sT0}, s{60+k}, s{59+k}')
            elif k == 36: e(f's_sub_u32 s{sT0}, s98, s95')
            elif k == 37: e(f's_sub_u32 s{sT0}, s98, s96')
            elif k == 38: e(f's_mov_b32 s{sT0}, s97')
            elif k == 39: e(f's_mov_b32 s{sT0}, s56')
            elif k == 40: e(f's_getreg_b32 s{sT0}, hwreg(HW_REG_XCC_ID)')
            e(f'v_mov_b32 v2, s{sT0}'); e(f'buffer_store_dword v2, v1, s[4:7], s16 offen offset:{4*k}')
    if args.span:
        e('s_waitcnt vmcnt(0)'); e('s_memrealtime s[94:95]'); e('s_waitcnt lgkmcnt(0)')
        e('s_mov_b32 s96, s94'); e('s_atomic_umax s96, s[68:69], 72'); e('s_waitcnt lgkmcnt(0)')
        e('s_cmp_lg_u32 s2, 100'); e('s_cbranch_scc1 main_done'); e(f's_cmp_lg_u32 s{sW}, 0'); e('s_cbranch_scc1 main_done')
        E.raw('spin1:'); e('s_memrealtime s[90:91]'); e('s_waitcnt lgkmcnt(0)'); e('s_sub_u32 s90, s90, s94'); e('s_cmp_lt_u32 s90, 1500'); e('s_cbranch_scc1 spin1')
        e('s_load_dwordx4 s[84:87], s[68:69], 64 glc'); e('s_waitcnt lgkmcnt(0)'); e('s_not_b32 s85, s85')
        if args.span == 1: e('s_sub_u32 s84, s84, s85')
        elif args.span == 2: e('s_sub_u32 s84, s86, s85')
        else: e('s_mov_b32 s84, 0')
        e('s_min_u32 s84, s84, 20000'); e('s_lshl_b32 s84, s84, 3'); e('s_add_u32 s84, s84, 12000')
        E.raw('spin2:'); e('s_memrealtime s[90:91]'); e('s_waitcnt lgkmcnt(0)'); e('s_sub_u32 s90, s90, s85'); e('s_cmp_lt_u32 s90, s84'); e('s_cbranch_scc1 spin2')
    E.raw('main_done:'); e('s_endpgm')
    E.raw('code_end:')
    E.raw('wt_loop:')
    wt_task(E)
    e('s_add_u32 s70, s70, 1'); e(f's_cmp_lt_u32 s70, {NWT}'); e('s_cbranch_scc1 wt_loop')
    e('s_waitcnt vmcnt(0)'); e('s_branch u_ready')
    return S

def kd(name, vg, acc_off, sg):
    return f""".amdhsa_kernel {name}
  .amdhsa_next_free_vgpr {vg}
  .amdhsa_next_free_sgpr {sg}
  .amdhsa_accum_offset {acc_off}
  .amdhsa_group_segment_fixed_size 0
  .amdhsa_kernarg_size 40
  .amdhsa_user_sgpr_count 2
  .amdhsa_user_sgpr_kernarg_segment_ptr 1
  .amdhsa_system_sgpr_workgroup_id_x 1
  .amdhsa_ieee_mode 0
.end_amdhsa_kernel"""

def add_pads(E):
    import subprocess, re, tempfile
    i1 = E.L.index('blk_loop:'); i2 = E.L.index('main_done:')
    tmp = tempfile.mkdtemp()
    txt = '\n'.join(l for l in E.L if l != '.p2align 3') + '\n.text\n' + ''.join(f'pad{k}:\n' for k in range(4))
    open(tmp + '/a.s', 'w').write(txt)
    subprocess.run(['clang', '-x', 'assembler', '-target', 'amdgcn-amd-amdhsa', '-mcpu=gfx950', '-c', tmp + '/a.s', '-o', tmp + '/a.o'], check=True)
    dis = subprocess.run(['llvm-objdump', '-d', '--mcpu=gfx950', tmp + '/a.o'], capture_output=True, text=True).stdout
    dis = dis[dis.index('<blk_loop>:' if '<blk_loop>:' in dis else '<sub0>:'):]
    sizes = [4 * len(m.group(1).split()) for m in re.finditer(r'// [0-9A-F]{12}: ((?:[0-9A-F]{8} ?)+)', dis)]
    out = []; addr = 0; n = 0; pads = []; want = 0; inburst = False
    for l in E.L[i1 + 1:i2]:
        if l == '.p2align 3':
            if addr % 8: out.append('    s_nop 0'); addr += 4
            inburst = True
            continue
        out.append(l)
        if not l.startswith('    '): continue
        addr += sizes[n]; n += 1
        mf = l.strip().startswith('v_mfma')
        if mf: inburst = False
        if addr >= want and (mf or inburst):
            pads.append(len(out)); out.append(None); addr += 4
            if inburst: out.append('    s_nop 0'); addr += 4
            want += 4096
    for k, i in enumerate(pads):
        out[i] = f'pad{k}:\n    s_cbranch_vccnz ' + (f'pad{k+4}' if k + 4 < len(pads) else 'warm_ret')
    E.L[i1 + 1:i2] = out
    print('pads', len(pads), 'loop+tail bytes', addr)

def main():
    E = Emit()
    E.raw("""; 3x3 conv via 1D Winograd F(4,3) along H + direct taps along W (generated by gen/gen11.py)
; @launch grid=(256,1,1) block=(256,1,1) lds=163840
.amdgcn_target "amdgcn-amd-amdhsa--gfx950"
.text""")
    load = main_kernel(E)
    E.raw('.section .rodata,"a"\n.p2align 6')
    E.raw(kd(KN, 512, 256, 102))
    if PADS: add_pads(E)
    open(args.out, 'w').write('\n'.join(E.L) + '\n')
    print(' '.join(f'{t}:{load.cycles(t)}' for t in range(36)), ' total', sum(load.cycles(t) for t in range(36)))
main()
```

```python
import sys, struct, argparse, os
sys.path.insert(0, os.path.dirname(os.path.abspath(__file__)))
import verify
from fractions import Fraction as Fr

ap = argparse.ArgumentParser()
ap.add_argument('out', nargs='?', default='standalone__winograd__vision.s')
ap.add_argument('--stamp', action='store_true')
ap.add_argument('--pro', action='store_true')
ap.add_argument('--help_at', type=int, default=9)
ap.add_argument('--early', type=int, default=9)
ap.add_argument('--haloat', type=int, default=1)
ap.add_argument('--span', type=int, default=0)
ap.add_argument('--rt', action='store_true')
ap.add_argument('--psleep', type=int, default=0)
ap.add_argument('--xdelay', type=int, default=0)
ap.add_argument('--idle', type=int, default=0)
ap.add_argument('--idle2', type=int, default=0)
ap.add_argument('--fine', type=int, default=-1)
ap.add_argument('--fwg', type=int, default=0)
ap.add_argument('--exp', default='')
ap.add_argument('--upol', default=' sc1')
ap.add_argument('--xpol', default='')
ap.add_argument('--xpol2', default='')
ap.add_argument('--xr2', default='012345')
ap.add_argument('--spol', default=' sc1')
ap.add_argument('--pollat', type=int, default=9)
ap.add_argument('--chkat', type=int, default=4)
ap.add_argument('--x1at', type=int, default=2)
ap.add_argument('--fpol', default='')
ap.add_argument('--pf', default='18f00,20f01,21f02,23f03')
ap.add_argument('--pl0', default='0')
ap.add_argument('--pl1', default='7')
ap.add_argument('--nearly', type=int, default=10)
ap.add_argument('--xg2', type=int, default=0)
ap.add_argument('--xsp2', type=int, default=4)
ap.add_argument('--xl2', type=int, default=1)
ap.add_argument('--npark', type=int, default=2)
ap.add_argument('--b35', type=int, default=51)
ap.add_argument('--ns35', type=int, default=7)
ap.add_argument('--skew', type=int, default=1)
ap.add_argument('--uearly', type=int, default=1)
ap.add_argument('--w31', type=float, default=30.1)
ap.add_argument('--xw', type=int, default=46)
ap.add_argument('--xw2', type=int, default=26)
ap.add_argument('--spols', default='nnnnn')
ap.add_argument('--g1pre', type=int, default=0)
ap.add_argument('--g1at', type=int, default=0)
ap.add_argument('--rot', type=int, default=0)
ap.add_argument('--rord', default='012345')
ap.add_argument('--xdn', type=int, default=16)
ap.add_argument('--mix2', type=int, default=10)
ap.add_argument('--mix3', type=int, default=7)
ap.add_argument('--prebar', type=int, default=15)
ap.add_argument('--x1in2', type=int, default=1)
ap.add_argument('--simple', type=int, default=1)
ap.add_argument('--warmlate', type=int, default=0)
ap.add_argument('--b34', type=int, default=75)
ap.add_argument('--b0g', type=int, default=17)
ap.add_argument('--nj35', type=int, default=7)
ap.add_argument('--y3end', type=float, default=1.4)
ap.add_argument('--stg', default='6,14,18,27,54,57,61')
ap.add_argument('--stp', default='24.1,27.0,31.1,34.97')
ap.add_argument('--upf', default='')
ap.add_argument('--ord', default='c6')
ap.add_argument('--ug', default='')
ap.add_argument('--xug', default='29,32,36,40,44,48,52,55,59')
ap.add_argument('--xg', type=int, default=31)
ap.add_argument('--xsp', type=int, default=4)
ap.add_argument('--probe', type=int, default=-1)
args = ap.parse_args()
XR2 = [int(c) for c in args.xr2]
EXP = set(x for x in args.exp.split(',') if x)
STAMP = args.stamp

def f32(x): return '0x%08x' % struct.unpack('<I', struct.pack('<f', float(x)))[0]

P = Fr(9, 16); Q = Fr(2); SIG = P * P + Q * Q; KAP = P * P * Q * Q
XB = 512 * 512 * 192 * 2
WB = 9 * 192 * 192 * 2
UB = 36 * 36864
ROWB = 512 * 384
OOB = 0x7F000000

UNIT = 2080
PLS = 40704
def plane(g): return g * PLS + (g >> 1) * 64
HOFF = 19 * UNIT
DUMMY = plane(3) + HOFF + 1152
assert DUMMY + 256 <= 163840
def rowpos(phi): return (48 - 16 * phi) if phi < 4 else (114 - 16 * (phi - 4))
B0U = {1: 7, 2: 8, 3: 9, 4: 10, 5: 11, 0: 16}
B5U = {2: 12, 3: 13, 4: 14, 5: 15, 0: 17, 1: 18}
Y0U, Y3U = 6, 8
def unit(pos, c):
    if pos == 0: return B0U[c]
    if pos == 5: return B5U[c]
    k = pos - 1
    if c % 2 == 0: return k
    if k < 3: return 4 + k
    return 0 if c == 5 else B5U[5]
def sub(t):
    if t < 24: return 1 + (t & 3), t >> 2
    if t < 30: return 0, (t - 23) % 6
    return 5, t - 30
SLOT = {0: 0, 1: 1, 4: 2, 3: 3, 2: 4, 5: 5}

S3, S4 = 0, 96
RAW = 192
VRING = 228
TMP = 248
vR, vU, vXW = 253, 254, 255
def acc(pos, j, q):
    o = (j * 3 + q) * 4
    if pos == 1: return f'a[{o}:{o+3}]'
    if pos == 2: return f'a[{96+o}:{96+o+3}]'
    if pos in (3, 0): return f'v[{S3+o}:{S3+o+3}]'
    return f'v[{S4+o}:{S4+o+3}]'
def ufrag(t, s, q):
    if t >= 34:
        o = 96 + ((t - 34) * 9 + s * 3 + q) * 4
        return f'a[{o}:{o+3}]'
    i = (t & 1) * 9 + s * 3 + q
    if i < 16: return f'a[{192+4*i}:{192+4*i+3}]'
    return f'v[{240+4*(i-16)}:{240+4*(i-16)+3}]'
def vfrag(F):
    if F >= 340:
        k, f = divmod(F - 340, 10); o = 48 + (k * 4 + f % 4) * 4
        return f'a[{o}:{o+3}]'
    b = VRING + 4 * (F % 3)
    return f'v[{b}:{b+3}]'
sROW = 16
sMASK, sNSIG, sNP2, sIK, sP, sNP, sNSK, sK = 22, 23, 24, 25, 26, 27, 28, 29
sP2, sQT, s2P, sP3h = 30, 31, 34, 35
sW, sGEN, sOUT, sOUT3, sT0, sT1, sT2, sT3 = 38, 39, 40, 41, 42, 43, 44, 45
sEXM = 46
sCB, sTR, sH, sRB, sW96, sWP, sT4 = 48, 49, 50, 51, 52, 53, 54
sPF, sPFD = 100, 101

class Op:
    def __init__(s, text, kind='alu', tag=None, need=(), cls=None):
        s.text, s.kind, s.tag, s.need = text, kind, tag, tuple(need)
        if cls is None:
            m = text.split()[0]
            if m.startswith('v_'): cls = 'v'
            elif m.startswith('s_'): cls = 's'
            elif m.startswith('ds_read'): cls = 'r'
            elif m == 'ds_write_b64': cls = 'w8'
            elif m == 'ds_write_b128': cls = 'w16'
            elif m.startswith('buffer_load_dwordx4'): cls = 'l4'
            elif m.startswith('buffer_load') or m.startswith('global_load'): cls = 'l2'
            elif m.startswith('buffer_store'): cls = 'st'
        s.cls = cls; s.notbefore = None
def A(text, need=()): return Op(text, 'alu', None, need)
def DS(text, tag, need=(), fp=None):
    o = Op(text, 'ds', tag, need); o.fp = fp
    return o
def VM(text, tag, need=()): return Op(text, 'vm', tag, need)
class Grp:
    def __init__(s, ops, cls): s.ops, s.cls, s.notbefore = ops, cls, None
class Wait:
    cls = 's'
    def __init__(s, tags): s.tags = tags; s.notbefore = None
class LgAll:
    cls = 's'; notbefore = None
class BarOnly:
    cls = 'bar'; notbefore = None
class Bar: pass
class Stamp:
    def __init__(s, k): s.k = k

class Emit:
    def __init__(s):
        s.L = []; s.vm = []; s.lg = []; s.late = 0; s.nsince = 0; s.lds = None; s.blk = 0
    def raw(s, x): s.L.append(x)
    def e(s, x): s.L.append('    ' + x)
    def wait(s, tags):
        nv = nl = None
        for tag in tags:
            if tag == 'carry':
                nv = s.nsince if nv is None else min(nv, s.nsince)
                continue
            iv = [i for i, t in enumerate(s.vm) if t == tag]
            if iv:
                n = len(s.vm) - 1 - iv[-1]; nv = n if nv is None else min(nv, n)
            il = [i for i, t in enumerate(s.lg) if t == tag]
            if il:
                n = len(s.lg) - 1 - il[-1]; nl = n if nl is None else min(nl, n)
        parts = []
        if nv is not None:
            nv = min(nv, 63); parts.append(f'vmcnt({nv})'); s.vm = s.vm[max(0, len(s.vm) - nv):] if nv else []
        if nl is not None:
            nl = min(nl, 15); parts.append(f'lgkmcnt({nl})'); s.lg = s.lg[len(s.lg) - nl:] if nl else []
        if parts: s.e('s_waitcnt ' + ' '.join(parts))
        return bool(parts)
    def op(s, o):
        if isinstance(o, (list, tuple)):
            for x in o: s.op(x)
        elif isinstance(o, Grp):
            for x in o.ops: s.op(x)
        elif isinstance(o, Wait): s.wait(o.tags)
        elif isinstance(o, LgAll):
            s.e('s_waitcnt lgkmcnt(0)'); s.lg = []
        elif isinstance(o, BarOnly):
            assert not s.lg, s.lg
            s.e('s_barrier')
            if s.lds: s.lds.barrier()
        elif isinstance(o, Bar):
            s.e('s_waitcnt lgkmcnt(0)'); s.lg = []; s.e('s_barrier')
            if s.lds: s.lds.barrier()
        elif isinstance(o, Stamp):
            if STAMP: s.e(f'{"s_memrealtime" if args.rt else "s_memtime"} s[{60+2*o.k}:{61+2*o.k}]')
        else:
            if o.need and s.wait(o.need): s.late += 1
            if 'nost' in EXP and o.cls == 'st': return
            if 'novr' in EXP and o.cls == 'r' and o.tag[0] == 'V' and o.tag[1] > 2: return
            if 'noodd' in EXP and getattr(o, 'odd', False): return
            s.e(o.text)
            if o.kind == 'ds':
                s.lg.append(o.tag)
                if s.lds:
                    for ranges, label, dg in o.fp:
                        s.lds.access('r' if o.cls == 'r' else 'w', ranges, (label, s.blk + dg), f'blk{s.blk}:{len(s.L)}:{o.text}', strict=(s.blk + dg >= 0))
            elif o.kind == 'vm': s.vm.append(o.tag); s.nsince += 1

def pr(r): return f'v[{r}:{r+1}]'
def transform(R, tag):
    ops = [Wait([tag] + (['carry'] if tag == ('x', 1) else []))]
    t1, t2, t3, t4, x = TMP, TMP + 1, TMP + 2, TMP + 3, TMP + 4
    first = True
    for d in range(2):
        D = [R + 2 * r + d for r in range(6)]
        for i, t in enumerate((t1, t2, t3, t4)):
            ops.append(A(f'v_lshlrev_b32 v{t}, 16, v{D[i+1]}', need=[tag] if first else ())); first = False
        for i in range(1, 5): ops.append(A(f'v_and_b32 v{D[i]}, s{sMASK}, v{D[i]}'))
        for (dd, la, lb, ha, hb, k1, k2) in ((D[0], t4, t2, D[4], D[2], sIK, sNSK), (D[5], t1, t3, D[1], D[3], sK, sNSIG)):
            ops.append(A(f'v_lshlrev_b32 v{x}, 16, v{dd}'))
            ops.append(A(f'v_and_b32 v{dd}, s{sMASK}, v{dd}'))
            ops.append(A(f'v_fmac_f32 v{x}, s{k1}, v{la}'))
            ops.append(A(f'v_fmac_f32 v{dd}, s{k1}, v{ha}'))
            ops.append(A(f'v_fmac_f32 v{x}, s{k2}, v{lb}'))
            ops.append(A(f'v_fmac_f32 v{dd}, s{k2}, v{hb}'))
            ops.append(A(f'v_cvt_pk_bf16_f32 v{dd}, v{x}, v{dd}'))
        for (a1, a2, a3, a4, xx) in ((t1, t2, t3, t4, x), (D[1], D[2], D[3], D[4], t2)):
            ops.append(A(f'v_fma_f32 v{xx}, v{a2}, s{sNP2}, v{a4}'))
            ops.append(A(f'v_fmac_f32 v{a4}, -4.0, v{a2}'))
            ops.append(A(f'v_fma_f32 v{a2}, v{a1}, s{sNP2}, v{a3}'))
            ops.append(A(f'v_fmac_f32 v{a3}, -4.0, v{a1}'))
            ops.append(A(f'v_fma_f32 v{a1}, v{a3}, s{sP}, v{a4}'))
            ops.append(A(f'v_fmac_f32 v{a4}, s{sNP}, v{a3}'))
            ops.append(A(f'v_fma_f32 v{a3}, v{a2}, 2.0, v{xx}'))
            ops.append(A(f'v_fmac_f32 v{xx}, -2.0, v{a2}'))
        ops.append(A(f'v_cvt_pk_bf16_f32 v{D[1]}, v{t1}, v{D[1]}'))
        ops.append(A(f'v_cvt_pk_bf16_f32 v{D[4]}, v{t4}, v{D[4]}'))
        ops.append(A(f'v_cvt_pk_bf16_f32 v{D[3]}, v{t3}, v{D[3]}'))
        ops.append(A(f'v_cvt_pk_bf16_f32 v{D[2]}, v{x}, v{t2}'))
    if 'novalu' in EXP: ops = ops[:1] + [A('s_nop 0') for _ in range(9)]
    return ops

def pkfma(d, a, k, c):
    if isinstance(k, str): sr, m = k, 'op_sel_hi:[1,0,1]'
    elif k % 2 == 0: sr, m = f's[{k}:{k+1}]', 'op_sel_hi:[1,0,1]'
    else: sr, m = f's[{k-1}:{k}]', 'op_sel:[0,1,0]'
    return f'v_pk_fma_f32 {pr(d)}, {pr(a)}, {sr}, {pr(c)} {m}'
def transform_pk(R, tag, T):
    ops = [Wait([tag])]
    def fma(d, a, k, c): ops.append(A(pkfma(d, a, k, c)))
    for d in range(2):
        D = [R + 2 * r + d for r in range(6)]
        p = [T + 2 * r for r in range(6)]; x = T + 12
        for r in range(6):
            ops.append(A(f'v_lshlrev_b32 v{p[r]}, 16, v{D[r]}', need=[tag])); ops.append(A(f'v_and_b32 v{p[r]+1}, s{sMASK}, v{D[r]}'))
        fma(p[0], p[4], sIK, p[0]); fma(p[5], p[1], sK, p[5])
        fma(p[0], p[2], sNSK, p[0]); fma(p[5], p[3], sNSIG, p[5])
        fma(x, p[2], sNP2, p[4]); fma(p[4], p[2], '-4.0', p[4]); fma(p[2], p[1], sNP2, p[3]); fma(p[3], p[1], '-4.0', p[3])
        fma(p[1], p[3], sP, p[4]); fma(p[4], p[3], sNP, p[4]); fma(p[3], p[2], '2.0', x); fma(p[2], p[2], '-2.0', x)
        for r in range(6): ops.append(A(f'v_cvt_pk_bf16_f32 v{D[r]}, v{p[r]}, v{p[r]+1}'))
    return ops

def xoff(h, c): return (h + 4 * (c & 1)) * 384 + (c >> 1) * 128 if 'fullline' in EXP else h * 384 + c * 64
def rawset(T): return RAW + 12 * ((T + (T > 30)) % 3)
def xloads(R, c, h, tag):
    ops = [A(f'v_and_b32 v{R+11}, 0x7fff, v{vXW}')]
    assert args.rord[-1] == '5'
    for r in [int(ch) for ch in args.rord]:
        ops.append(VM(f'buffer_load_dwordx2 v[{R+2*r}:{R+2*r+1}], v{R+11}, s[4:7], s{sROW+r} offen offset:{xoff(h, c)}{args.xpol2 if (c & 1 and r in XR2) else args.xpol}', tag))
    return ops

def vwrites(R, c, h, dg=0, two=False):
    ad = A(f'v_lshrrev_b32 v{TMP+4}, 15, v{vXW}')
    w = {}
    for pos in range(6):
        r = R + 2 * SLOT[pos]
        w[pos] = DS(f'ds_write_b64 v{R + 2 * SLOT[1] if (two and pos != 1) else TMP+4}, v[{r}:{r+1}] offset:{unit(pos,c)*UNIT+(48-16*h)*16}', 'w',
                    fp=[([(unit(pos,c)*UNIT+rowpos(p)*16, unit(pos,c)*UNIT+rowpos(p)*16+256) for p in (h, h+4)], ('V', pos, c), dg)])
    return ad, w

def halo_loads(R, tag):
    a, b, c_ = R + 11, R + 10, R + 9
    ops = [A(f'v_and_b32 v{a}, 0xf0, v{vU}'),
           A(f'v_lshrrev_b32 v{a}, 1, v{a}'),
           A(f'v_add_u32 v{a}, s{sW96}, v{a}'),
           A(f'v_mov_b32 v{b}, s{sT4}'),
           A(f'v_mov_b32 v{c_}, s{sT4+1}'),
           A(f'v_cndmask_b32 v{b}, v{b}, v{c_}, s[56:57]'),
           A(f'v_add_u32 v{a}, v{a}, v{b}')]
    for r in range(6):
        ops += [A(f's_sub_u32 s{sT3}, s{sROW+r}, s{sH}'),
                VM(f'buffer_load_dwordx2 v[{R+2*r}:{R+2*r+1}], v{a}, s[4:7], s{sT3} offen', tag)]
    return ops

def halo_writes(R, dg=0, direct=False):
    a, b, c_ = TMP + 4, TMP, TMP + 1
    ops = [A(f'v_and_b32 v{b}, 0xf0, v{vU}'),
           A(f'v_lshrrev_b32 v{b}, 1, v{b}'),
           A(f'v_add_u32 v{b}, s{sW96}, v{b}'),
           A(f'v_and_b32 v{a}, 8, v{b}'),
           A(f'v_lshrrev_b32 v{c_}, 6, v{b}'),
           A(f'v_mul_u32_u24 v{c_}, 192, v{c_}')] + ([A(f'v_cmp_eq_u32 s[92:93], 0, v{c_}')] if direct else []) + [
           A(f'v_add_u32 v{a}, v{a}, v{c_}'),
           A(f'v_bfe_u32 v{c_}, v{b}, 4, 2'),
           A(f'v_mul_u32_u24 v{c_}, {PLS}, v{c_}'),
           A(f'v_add_u32 v{a}, v{a}, v{c_}'),
           A(f'v_and_b32 v{c_}, 32, v{b}'),
           A(f'v_lshl_add_u32 v{a}, v{c_}, 1, v{a}'),
           A(f'v_bfe_u32 v{c_}, v{vU}, 8, 1'),
           A(f'v_lshl_add_u32 v{a}, v{c_}, 4, v{a}'),
           A(f'v_mov_b32 v{c_}, {DUMMY-HOFF}'),
           A(f'v_cndmask_b32 v{a}, v{c_}, v{a}, s[58:59]')]
    for pos in range(6):
        r = R + 2 * SLOT[pos]
        ops.append(DS(f'ds_write_b64 v{a}, v[{r}:{r+1}] offset:{HOFF+32*pos}', 'w',
                      fp=[([(HOFF+c*192+32*pos, HOFF+c*192+32*pos+32) for c in range(6)], 'H', dg)]))
    if direct:
        ops.append(A('s_and_b64 exec, s[92:93], s[58:59]'))
        for pos in range(6):
            r = R + 2 * SLOT[pos]; o = unit(pos, 0) * UNIT + 1024
            ops.append(DS(f'ds_write_b64 v{a}, v[{r}:{r+1}] offset:{o}', 'w', fp=[([(o, o + 32)], ('V', pos, 0), dg)]))
        ops.append(A('s_mov_b64 exec, -1'))
    return ops

def halo_copy(c, R, dg=0):
    lit = sum(unit(pos, c) << (5 * pos) for pos in range(6))
    a, b = R + 4, R + 5
    return [DS(f'ds_read_b128 v[{R}:{R+3}], v{vR} offset:{HOFF+c*192}', 'hc', fp=[([(HOFF+c*192, HOFF+c*192+192)], 'H', dg)]),
            A(f's_mov_b32 s{sT3}, {lit}'),
            A(f'v_bfe_u32 v{a}, v{vU}, 5, 3'),
            A(f'v_mul_u32_u24 v{b}, 5, v{a}'),
            A(f'v_bfe_u32 v{b}, s{sT3}, v{b}, 5'),
            A(f'v_mul_u32_u24 v{b}, 65, v{b}'),
            A(f'v_sub_u32 v{b}, v{b}, v{a}'),
            A(f'v_lshl_add_u32 v{a}, v{b}, 5, v{vR}'),
            Wait(['hc']),
            Grp([A(f's_mov_b64 exec, s[{sEXM}:{sEXM+1}]'),
                 DS(f'ds_write_b128 v{a}, v[{R}:{R+3}] offset:1024', 'w', need=['hc'],
                    fp=[([(unit(pos,c)*UNIT+1024, unit(pos,c)*UNIT+1056)], ('V', pos, c), dg) for pos in range(6)]),
                 A('s_mov_b64 exec, -1')], 'w16')]

def prefetch(reg, g, k, kind='n'):
    sr = sPE if kind == 'e' else sPF
    return [A(f'v_and_b32 v{reg}, 0x1f0, v{vU}'), A(f'v_mul_u32_u24 v{reg}, 96, v{reg}'),
            VM(f'buffer_load_dword v{reg}, v{reg}, s[4:7], s{sr} offen offset:{k*384+g*128}', 'pf')]

sUP = 32
def uprefetch(reg, t0):
    return [A(f's_add_u32 s3, s{sUP}, {t0*36864}'),
            A(f'v_and_b32 v{reg}, 0xf0, v{vU}'), A(f'v_lshlrev_b32 v{reg}, 10, v{reg}'),
            VM(f'buffer_load_dword v{reg}, v{reg}, s[8:11], s3 offen sc1', 'pf')]

def stage_addr(a128, a64, t):
    return [A(f'v_bfe_u32 v{t}, v{vU}, 6, 2'),
            A(f'v_mul_u32_u24 v{a128}, {PLS}, v{t}'),
            A(f'v_and_b32 v{t}, 0x80, v{vU}'),
            A(f'v_lshrrev_b32 v{t}, 1, v{t}'),
            A(f'v_add_u32 v{a128}, v{a128}, v{t}'),
            A(f'v_and_b32 v{t}, 0x40, v{vU}'),
            A(f'v_lshrrev_b32 v{t}, 2, v{t}'),
            A(f'v_add_u32 v{a128}, v{a128}, v{t}'),
            A(f'v_bfe_u32 v{t}, v{vU}, 4, 2'),
            A(f'v_mul_u32_u24 v{t}, 3104, v{t}'),
            A(f'v_add_u32 v{a128}, v{a128}, v{t}'),
            A(f'v_add_u32 v{a128}, s{sW96}, v{a128}'),
            A(f'v_lshrrev_b32 v{t}, 8, v{vU}'),
            A(f'v_lshl_add_u32 v{a64}, v{t}, 3, v{a128}'),
            A(f'v_lshl_add_u32 v{a128}, v{t}, 4, v{a128}')]

def stage_write(a128, a64, u0, j, q4, q2, lab):
    fp = [([(u0*UNIT+g8*3104+j*384, u0*UNIT+g8*3104+j*384+384) for g8 in range(4)], lab[0], lab[1])]
    w = [DS(f'ds_write_b128 v{a128}, {q4} offset:{u0*UNIT+j*384}', 'w', fp=fp),
         DS(f'ds_write_b64 v{a64}, {q2} offset:{u0*UNIT+j*384+64}', 'w', fp=fp)]
    for x in w: x.flo = True
    return w

def cvt_stage(S, a128, a64, u0, lab, js=range(8), nb=None, after0=(), q2last=False):
    ops = []
    for j in js:
        b = S + 12 * j
        w = stage_write(TMP if (after0 and j == 0) else a128, TMP + 1 if (after0 and j == 0) else a64, u0, j, f'v[{b}:{b+3}]', f'v[{b+8}:{b+9}]', lab)
        o = [A(f'v_cvt_pk_bf16_f32 v{b+8+k}, v{b+8+2*k}, v{b+8+2*k+1}') for k in range(2)] + [w[1]]
        o += [A(f'v_cvt_pk_bf16_f32 v{b+k}, v{b+2*k}, v{b+2*k+1}') for k in range(4)] + [w[0]]
        if nb is not None: o[0].notbefore = nb(j)
        if q2last:
            if nb is not None: o[3].notbefore = nb(j) - 6
            o = o[3:] + o[:3]
        ops += o
        if j == 0: ops += list(after0)
    return ops

def rb_read(areg, u0, buf, g8, k, lab):
    o = u0 * UNIT + g8 * 3104 + k * 1024
    return DS(f'ds_read_b128 {buf}, v{areg} offset:{o}', (lab[0], g8, k), fp=[([(o, o + 1024)], lab[0], lab[1])])
SPOL = dict(zip(('Y2', 'Y1', 'Y0', 'Y3', 'T'), [{'s': ' sc1', 'n': ' nt', 'p': '', 'b': ' sc1 nt'}[c] for c in args.spols]))
def rb_store(buf, sbase, rowoff, g8, k, lab):
    return [A(f's_add_u32 s{sT2}, s{sbase}, {rowoff+g8*3072+k*1024}'),
            VM(f'buffer_store_dwordx4 {buf}, v{vU}, s[12:15], s{sT2} offen{SPOL[lab[0]]}', 'st', need=[(lab[0], g8, k)])]

def uload(t, s, q):
    t %= 36
    return VM(f'buffer_load_dwordx4 {ufrag(t,s,q)}, v{vU}, s[8:11], s{sT0} offen offset:{q*1024}{args.upol}', ('U', t, s))
sPE, sPED = 37, 33
sUW = 36
def usoff(t, s):
    if t >= 36: return A(f's_add_u32 s{sT0}, s{sUW}, {(t%36)*36864+s*3072}')
    if 24 <= t < 30: t = 24 + sub(t)[1]
    return A(f's_mov_b32 s{sT0}, {t*36864+s*3072}')

def vread(F):
    dg = F // 360; F %= 360
    t, f = divmod(F, 10)
    pos, c = sub(t)
    e = 65 if f == 0 else (49 if f == 9 else rowpos(f - 1))
    return DS(f'ds_read_b128 {vfrag(F)}, v{vR} offset:{unit(pos,c)*UNIT+e*16}', ('V', F),
              fp=[([(unit(pos,c)*UNIT+e*16, unit(pos,c)*UNIT+e*16+256)], ('V', pos, c), dg)])

def rows_setup(loop=False):
    o = [A(f's_mul_i32 s{sT1}, s{sTR}, {4*ROWB}') if 'xsame' not in EXP else A(f's_mov_b32 s{sT1}, {4*ROWB}'),
         A(f's_add_u32 s{sT1}, s{sT1}, s{sWP}'),
         Grp([A(f's_cmp_ge_u32 s{sTR}, 128'), A(f's_cselect_b32 s{sT1}, {OOB}, s{sT1}')], 'r'),
         A(f's_sub_u32 s{sROW}, s{sT1}, {ROWB}'),
         Grp([A(f's_cmp_eq_u32 s{sTR}, 0'), A(f's_cselect_b32 s{sROW}, {OOB}, s{sROW}')], 'r'),
         A(f's_mov_b32 s{sROW+1}, s{sT1}')]
    for r in range(2, 6): o.append(A(f's_add_u32 s{sROW+r}, s{sT1}, {(r-1)*ROWB}'))
    o.append(A(f's_add_u32 s{sPF}, s{sT1}, s{sPFD}'))
    if loop: o.append(A(f's_add_u32 s{sPE}, s{sT1}, s{sPED}'))
    return o

EARLYT = set()
PL0 = [int(c) for c in args.pl0]; PL1 = [int(c) for c in args.pl1]
OA, OB = RAW + 2, RAW + 28
def early_ab(tiles, nb):
    ops = []
    T1, T2, T3 = RAW + 12, RAW + 16, RAW + 20
    for (j, q) in tiles:
        o = (j * 3 + q) * 4
        l = [A(f'v_accvgpr_read_b32 v{T1+r}, a{o+r}') for r in range(4)] + [A(f'v_accvgpr_read_b32 v{T2+r}, a{96+o+r}') for r in range(4)]
        l[4].notbefore = nb(j, q)
        l += [A(f'v_add_f32 v{T3+r}, v{T1+r}, v{T2+r}') for r in range(4)] + [A(f'v_sub_f32 v{T1+r}, v{T1+r}, v{T2+r}') for r in range(4)]
        l += [A(f'v_accvgpr_write_b32 a{o+r}, v{T3+r}') for r in range(4)] + [A(f'v_accvgpr_write_b32 a{96+o+r}, v{T1+r}') for r in range(4)]
        ops += l; EARLYT.add((j, q))
    return ops
def even_plain(j, T1, T2, O, nb=None):
    ops = []
    for q in range(3):
        o = (j * 3 + q) * 4
        l = [A(f'v_accvgpr_read_b32 v{T1+r}, a{o+r}') for r in range(4)]
        if (j, q) not in EARLYT:
            l += [A(f'v_accvgpr_read_b32 v{T2+r}, a{96+o+r}') for r in range(4)] + [A(f'v_add_f32 v{T1+r}, v{T1+r}, v{T2+r}') for r in range(4)]
        m = [A(f'v_add_f32 v{T2+r}, v{S3+o+r}, v{S4+o+r}') for r in range(4)]
        if nb: m[0].notbefore = nb(j, q)
        m += [A(f'v_sub_f32 v{S4+o+r}, v{S3+o+r}, v{S4+o+r}') for r in range(4)]
        m += [A(f'v_fma_f32 v{S3+o+r}, v{T2+r}, s{sQT}, v{T1+r}') for r in range(4)]
        m[-1].mark = ('y0', j, q)
        m += [A(f'v_fmac_f32 v{T2+r}, s{sP2}, v{T1+r}') for r in range(4)]
        m += [A(f'v_cvt_pk_bf16_f32 v{O+2*q+h}, v{T2+2*h}, v{T2+2*h+1}') for h in (0, 1)]
        ops += l + m
    return ops
def burst(E):
    a128, a64 = TMP, TMP + 1
    for i in range(args.idle2): E.e('s_sleep 37')
    js = [j for j in range(8) if j not in PL0 and j not in PL1]
    if js[0] >= 6: E.e('s_nop 7')
    E.raw('.p2align 3')
    neg = 'neg_lo:[0,1] neg_hi:[0,1]'
    pend = []
    for j in PL0:
        w = stage_write(a128, a64, 0, j, f'v[{OA}:{OA+3}]', f'v[{OA+4}:{OA+5}]', ('Y2', 0))
        E.op(w[0]); pend.append(w[1])
    for n, j in enumerate(js):
        O1 = (OB, OA)[n & 1]
        for q in range(3):
            o = (j * 3 + q) * 4
            T1, T2 = RAW + 12 + (q & 1) * 8, RAW + 12 + (q & 1) * 8 + 4
            for r in range(4): E.e(f'v_accvgpr_read_b32 v{T1+r}, a{o+r}')
            if (j, q) not in EARLYT:
                for r in range(4): E.e(f'v_accvgpr_read_b32 v{T2+r}, a{96+o+r}')
                for h in (0, 2): E.e(f'v_pk_add_f32 {pr(T1+h)}, {pr(T1+h)}, {pr(T2+h)}')
            for h in (0, 2): E.e(f'v_pk_add_f32 {pr(T2+h)}, {pr(S3+o+h)}, {pr(S4+o+h)}')
            for h in (0, 2): E.e(f'v_pk_add_f32 {pr(S4+o+h)}, {pr(S3+o+h)}, {pr(S4+o+h)} {neg}')
            for h in (0, 2): E.e(pkfma(S3 + o + h, T2 + h, sQT, T1 + h))
            for h in (0, 2): E.e(pkfma(T1 + h, T1 + h, sP2, T2 + h))
            for h in (0, 1): E.e(f'v_cvt_pk_bf16_f32 v{O1+2*q+h}, v{T1+2*h}, v{T1+2*h+1}')
            w = stage_write(a128, a64, 0, j, f'v[{O1}:{O1+3}]', f'v[{O1+4}:{O1+5}]', ('Y2', 0))
            if q == 0 and pend: E.op(pend.pop())
            if q == 1: E.op(w[0])
            if q == 2: pend.append(w[1])
    E.op(pend); E.op(Bar())

def odd_part(a128, a64, npark, g_ok, order):
    ops = []
    T1, T2 = RAW + 12, RAW + 16; wr = {}
    for n, j in enumerate(order):
        O1 = RAW + ((n + 1) & 1) * 6
        for q in range(3):
            o = (j * 3 + q) * 4
            if (j, q) in EARLYT:
                for r in range(4): ops.append(A(f'v_accvgpr_read_b32 v{T1+r}, a{96+o+r}'))
            else:
                for r in range(4): ops.append(A(f'v_accvgpr_read_b32 v{T1+r}, a{o+r}'))
                for r in range(4): ops.append(A(f'v_accvgpr_read_b32 v{T2+r}, a{96+o+r}'))
                for r in range(4): ops.append(A(f'v_sub_f32 v{T1+r}, v{T1+r}, v{T2+r}'))
            for r in range(4): ops.append(A(f'v_fma_f32 v{T2+r}, v{T1+r}, s{s2P}, v{S4+o+r} div:2'))
            for r in range(4): ops.append(A(f'v_fma_f32 v{S4+o+r}, v{T1+r}, s{sP3h}, v{S4+o+r} mul:2'))
            for h in (0, 1): ops.append(A(f'v_cvt_pk_bf16_f32 v{O1+2*q+h}, v{T2+2*h}, v{T2+2*h+1}'))
            ops[-2].after = wr.get(n - 2, [])
            ops[-1].mark = ('odd', j, q)
            if n < npark:
                for h in (0, 1): ops.append(A(f'v_accvgpr_write_b32 a{12*j+2*q+h}, v{O1+2*q+h}'))
            else:
                w = stage_write(a128, a64, 0, j, f'v[{O1}:{O1+3}]', f'v[{O1+4}:{O1+5}]', ('Y1', 0))
                for x in w: x.notbefore = g_ok
                if q: ops.append(w[q - 1]); wr.setdefault(n, []).append(w[q - 1])
            if n < npark: ops[-1].mark = ('park', j, q)
    for o in ops:
        if o.cls == 'v': o.odd = True
    return ops

def morder():
    L = []
    if args.ord == 'v':
        for f in range(10):
            L += [(f - s, s, q) for s in range(3) if 0 <= f - s <= 7 for q in range(3)]
    elif args.ord in ('c5', 'c4', 'c6'):
        for j in range(8):
            if j in (0, 7): L += [(j, s, q if s != 1 else 2 - q) for s in range(3) for q in range(3)]
            elif args.ord == 'c6': L += [(j, 0, 0), (j, 1, 0), (j, 2, 0), (j, 2, 1), (j, 1, 1), (j, 0, 1), (j, 0, 2), (j, 1, 2), (j, 2, 2)]
            elif args.ord == 'c5': L += [(j, 0, 0), (j, 1, 0), (j, 1, 1), (j, 0, 1), (j, 2, 1), (j, 0, 2), (j, 1, 2), (j, 2, 2), (j, 2, 0)]
            else: L += [(j, 0, 0), (j, 1, 0), (j, 1, 1), (j, 0, 1), (j, 0, 2), (j, 1, 2), (j, 2, 2), (j, 2, 1), (j, 2, 0)]
    else:
        for j in range(8):
            if j == 0 or (j == 7 and args.ord == 'c2'): L += [(j, s, q) for s in range(2) for q in range(3)]
            else: L += [(j, 0, 0), (j, 1, 0), (j, 1, 1), (j, 0, 1), (j, 0, 2), (j, 1, 2)]
            if j: L += [(j - 1, 2, q) for q in range(3)]
        L += [(7, 2, q) for q in range(3)]
    assert len(L) == 72 and len(set(L)) == 72
    return L
MO = morder()
VF = [min(m for m, (j, s, q) in enumerate(MO) if j + s == f) for f in range(10)]
VL = [max(m for m, (j, s, q) in enumerate(MO) if j + s == f) for f in range(10)]
UF = {(s, q): min(m for m, x in enumerate(MO) if x[1:] == (s, q)) for s in range(3) for q in range(3)}
UL = {(s, q): max(m for m, x in enumerate(MO) if x[1:] == (s, q)) for s in range(3) for q in range(3)}
AF = {(j, q): min(m for m, x in enumerate(MO) if (x[0], x[2]) == (j, q)) for j in range(8) for q in range(3)}
AL = {(j, q): max(m for m, x in enumerate(MO) if (x[0], x[2]) == (j, q)) for j in range(8) for q in range(3)}
MX = []
for j in range(8):
    for q in range(3):
        ks = [(k, s_) for k in range(2) for s_ in range(3)]
        MX += [(j, q, k, s_) for (k, s_) in (ks[::-1] if q == 1 else ks)]
if args.skew:
    MX = [x for x in MX[:36] if x[2] == 0] + [x for x in MX[:36] if x[2] == 1] + MX[36:]
XUF = {(k, s_): min(m for m, x in enumerate(MX) if x[2:] == (k, s_)) for k in range(2) for s_ in range(3)}
XAL = {j: max(m for m, x in enumerate(MX) if x[0] == j) for j in range(8)}
XVF = {(k, f): min(m for m, x in enumerate(MX) if (x[2], x[0] + x[3]) == (k, f)) for k in range(2) for f in range(10)}
XVL = {(k, f): max(m for m, x in enumerate(MX) if (x[2], x[0] + x[3]) == (k, f)) for k in range(2) for f in range(10)}
def mfma_list(t):
    pos, c = sub(t)
    L = []
    if t >= 34:
        for (j, q, k, s) in MX[72 * (t - 34):72 * (t - 33)]:
            d = acc(5, j, q); F = 340 + 10 * k + j + s
            L.append(Op(f'v_mfma_f32_16x16x32_bf16 {d}, {ufrag(34+k,s,q)}, {vfrag(F)}, {d}', 'mfma', None, [('U', 34 + k, s), ('V', F)]))
        return L
    for m, (j, s, q) in enumerate(MO):
        d = acc(pos, j, q)
        cc = '0' if (t < 4 and AF[(j, q)] == m) else d
        L.append(Op(f'v_mfma_f32_16x16x32_bf16 {d}, {ufrag(t,s,q)}, {vfrag(10*t+j+s)}, {cc}', 'mfma', None,
                    [('U', t, s), ('V', 10 * t + j + s)]))
    return L

BARS = [0, 3, 7, 11, 15, 16, 19, 23] + ([24] if args.pl1 else []) + [25, 26, 28, 29, 30, 33, 34, 35]
BG = 62 if args.ord in ('v', 'c2', 'c2f') else 64
B35G = args.b35; B34G = args.b34
NJ35 = args.nj35; NS35 = args.ns35
B0G = args.b0g
AY, AY2, AYR = S3 + 4, S3 + 5, S3 + 6
UG = [int(x) for x in (args.ug or {'v': '57,60,65,69,73,77,81,85,88', 'c2': '60,64,67,72,76,80,84,88,92', 'c2f': '65,67,70,73,76,80,84,87,90', 'c5': '66,69,72,76,80,84,88,92,96', 'c4': '66,69,72,76,80,84,88,92,96', 'c6': '66,69,72,76,80,84,88,93,97'}[args.ord]).split(',')]
XG0 = args.xg
CAP = {None: 2, 'l0': 0, 's': 2, 'r': 1, 'l4': 0, 'l2': 0, 'w8': 0, 'w16': 0, 'st': 2, 'bar': 0}
RES = {'l4': ('vm', 3), 'l2': ('vm', args.xsp), 'st': ('vm', 3), 'w8': ('wr', 2), 'w16': ('wr', 4)}
PEN = {'w8': 4, 'w16': 12, 'st': 12, 'bar': 8}
N = 36 * 72
STG = set(int(x) for x in args.stg.split(',') if x)

class Sched:
    def __init__(s):
        s.head = [None] * N; s.body = [[] for _ in range(N)]
        s.busy = {'vm': [False] * N, 'wr': [False] * N}
        s.resv = True; s.xsub = set(); s.nolds = [False] * N; s.marks = {}
    def tight(s, G):
        t, g = divmod(G, 72)
        if args.uearly and ((t == 35 and g >= 48) or (t == 0 and g <= 20)): return False
        if not args.uearly and ((t == 33 and g >= 59) or (t == 34 and g <= 20)): return False
        return t in s.xsub or t == 33
    def cap(s, g): return CAP[s.head[g].cls if s.head[g] is not None else None]
    def fix(s, g, o):
        g %= N
        assert s.head[g] is None, (g // 72, g % 72, o.cls, s.head[g].cls)
        s.head[g] = o
        if o.cls in RES:
            r, k = RES[o.cls]
            for i in range(k): s.busy[r][(g + i) % N] = True
    def try_place(s, ops, g0, g1, rho, phi, relax=0):
        plan = []; g = g0; n = len(ops)
        hd = {}; bd = {}; bz = set(); pos = {}
        def extra(g): return int((g + 1) * phi) - int(g * phi)
        own_body_at = -1
        for k, o in enumerate(ops):
            g = max(g, g0 + int(rho * k * (g1 - g0) / n))
            for x in getattr(o, 'after', ()): g = max(g, pos[id(x)])
            gsave = g
            if o.notbefore is not None: g = max(g, o.notbefore)
            while True:
                if g > g1: return None
                G = g % N
                h = s.head[G] if s.head[G] is not None else hd.get(G)
                nb = len(s.body[G]) + bd.get(G, 0)
                capn = CAP[h.cls if h is not None else None] + extra(g)
                if o.cls != 'v' and h is None and own_body_at < g and nb <= CAP[o.cls] + extra(g):
                    ok = not (s.resv and o.cls != 'st' and (G % 72) in STG and s.tight(G))
                    if o.cls in ('r', 'w8', 'w16', 'st') and s.nolds[G]: ok = False
                    if o.cls == 'st' and STG and s.tight(G):
                        ok = (G % 72) in STG; r, kk = 'vm', 1
                    elif ok and o.cls in RES:
                        r, kk = RES[o.cls]; kk = max(1, kk - relax)
                        ok = not any(s.busy[r][(g + i) % N] or (r, (g + i) % N) in bz for i in range(kk))
                    if ok:
                        hd[G] = o; plan.append((g, 'h', o))
                        if o.cls in RES:
                            for i in range(kk): bz.add((r, (g + i) % N))
                        break
                if o.cls in ('v', 's') and nb < capn:
                    bd[G] = bd.get(G, 0) + 1; plan.append((g, 'b', o)); own_body_at = g
                    break
                g += 1
            if g > getattr(o, 'deadline', g): return None
            pos[id(o)] = g
            if getattr(o, 'flo', False): g = gsave
        return plan
    def place(s, ops, g0, g1, spread=True):
        tries = [(r / 10, 0.0) for r in range(10 if spread else 0, -1, -1)] + [(0.0, p / 20) for p in range(1, 61)]
        tries = [(r, p, x) for x in (0, 1, 2) for (r, p) in tries]
        for rho, phi, relax in tries:
            plan = s.try_place(ops, g0, g1, rho, phi, relax)
            if plan is not None:
                if relax or phi: print(f'  stream {g0//72}:{g0%72}..{g1//72}:{g1%72} relax {relax} overflow {phi}')
                break
        else: raise Exception(f'cannot place stream in {g0//72}:{g0%72}..{g1//72}:{g1%72}')
        return s.commit(plan)
    def commit(s, plan):
        for g, k, o in plan:
            if k == 'h': s.fix(g, o)
            else: s.body[g % N].append(o)
            if hasattr(o, 'mark'): s.marks[o.mark] = g
            o.at = g
        return max(p[0] for p in plan)
    def alap_heads(s, ops, g1, g0):
        g = g1
        for o in ops[::-1]:
            r, k = RES[o.cls]
            while True:
                assert g >= g0, 'alap'
                G = g % N
                if s.head[G] is None and len(s.body[G]) == 0 and not any(s.busy[r][(g + i) % N] for i in range(k)): break
                g -= 1
            s.fix(g, o); o.at = g; g -= 1
    def late_wait(s, w, lo, hi):
        for g in range(hi, lo - 1, -1):
            if s.head[g % N] is None:
                s.fix(g, w); return
            if isinstance(s.head[g % N], Wait):
                s.head[g % N] = Wait(list(s.head[g % N].tags) + list(w.tags)); return
        s.body[hi % N].append(w)
    def cycles(s, t):
        c = 0
        for g in range(72 * t, 72 * t + 72):
            h = s.head[g]
            c += 16 + (PEN.get(h.cls, 0) if h is not None else 0) + 4 * max(0, len(s.body[g]) - s.cap(g))
        return c

def build_body():
    S = Sched()
    vissue = {}
    for t in range(36):
        b = 72 * t
        if t in BARS:
            gb = {0: B0G, 34: B34G, 35: B35G}.get(t, BG)
            S.fix(b + gb - 1, Grp([Stamp(1 + BARS.index(t)), LgAll()], 's')); S.fix(b + gb, BarOnly())
        for f in range(10):
            if 10 * t + f + 3 >= 340: continue
            gend = VL[f]
            if f == 7: gend = max(gend, BG + 1)
            assert gend not in (BG - 1, BG)
            S.fix(b + gend, vread(10 * t + f + 3)); vissue[(10 * t + f + 3) % 360] = b + gend
    def uburst(b, gaps, tu, lo0):
        for i in range(9): S.fix(b + gaps[i], uload(tu, i // 3, i % 3))
        for i in (0, 3, 6):
            lo = gaps[i - 1] if i else lo0
            g = next(g for g in range(max(lo + 1, gaps[i] - 4), gaps[i]) if S.head[(b + g) % N] is None)
            S.fix(b + g, usoff(tu, i // 3))
    for i in range(9): assert UG[i] >= UL[(i // 3, i % 3)]
    XG = [int(x) for x in args.xug.split(',')]
    for t in range(36):
        if t == (35 if args.uearly else 33): continue
        uburst(72 * t, UG, t + 2 + (t >= 33 and args.uearly), XG[8] if t == 33 else UG[8] - 72)
    uburst(72 * 33, XG, 35, UG[8] - 72)
    def vplace(F, g0, g1):
        g = next(g for g in range(g0, g1 + 1) if S.head[g % N] is None)
        S.fix(g, vread(F)); vissue[F % 360] = g; return g
    g = 72 * 33 + 20
    for f in range(4):
        for k in range(2): g = vplace(340 + 10 * k + f, g + 4, 72 * 33 + 66)
    for f in range(4, 10):
        for k in range(2): vplace(340 + 10 * k + f, 72 * 34 + XVL[(k, f - 4)], 72 * 34 + XVF[(k, f)] - 8)
    g = 72 * 35 + B35G
    for F in (360, 361, 362): g = vplace(F, g + 1, 72 * 35 + 68)
    for t in range(34):
        b = 72 * t
        for s_ in range(3):
            m = min(UF[(s_, q)] for q in range(3))
            S.late_wait(Wait([('U', t, s_)] + (['carry'] if t == 1 else [])), b + m - 3, b + m - 1)
        for f in range(10):
            F = 10 * t + f; hi = b + VF[f] - 1
            iss = vissue[F]
            if iss > hi: iss -= N
            S.late_wait(Wait([('V', F)]), min(hi, max(iss + 4, hi - 6)), hi)
    b = 72 * 34
    for k in range(2):
        for s_ in range(3): S.late_wait(Wait([('U', 34 + k, s_)]), b + XUF[(k, s_)] - 3, b + XUF[(k, s_)] - 1)
        for f in range(10):
            hi = b + XVF[(k, f)] - 1
            S.late_wait(Wait([('V', 340 + 10 * k + f)]), max(vissue[340 + 10 * k + f] + 4, hi - 6), hi)
    wins = [(T, T // 4 + 1, T % 4) for T in range(20)] + [(31 + h, 0, h) for h in range(4)]
    if 'noprod' in EXP: wins = []
    S.xsub = set((T - 2) % 36 for (T, c, h) in wins)
    PF = {}
    for spec in args.pf.split(','):
        if spec: PF.setdefault(int(spec[:-3]), []).append(lambda r, spec=spec: prefetch(r, int(spec[-2]), int(spec[-1]), spec[-3]))
    for spec in args.upf.split(','):
        if spec: PF.setdefault(int(spec.split(':')[0]), []).append(lambda r, spec=spec: uprefetch(r, int(spec.split(':')[1])))
    for (T, c, h) in wins:
        R = rawset(T); t = (T - 2) % 36
        ops = xloads(R, c, h, ('x', T))
        for i, f in enumerate(PF.pop(t, [])): ops = f(R + 10 - i) + ops
        late = args.xg2 and (t >= 29 or t <= args.xl2)
        if late: RES['l2'] = ('vm', args.xsp2)
        gx = S.place(ops, 72 * t + (args.xg2 - 1 if late else XG0 - 4), 72 * t + 59, spread=False)
        RES['l2'] = ('vm', args.xsp)
        if T == 19: g19 = gx
    if not wins: g19 = 72 * 17 + 50
    S.place([A(f's_add_u32 s{sTR}, s{sTR}, 8'), Grp([A(f's_cmp_eq_u32 s{sGEN}, 1'), A(f's_cselect_b32 s{sTR}, 128, s{sTR}'), A(f's_cselect_b32 s{sUW}, {OOB}, 0')], 'l0')] + rows_setup(True),
            g19 + 1, 72 * 18 + XG0 - 5)
    HR = RAW + 24
    ops = halo_loads(HR, ('x', 20))
    for i, f in enumerate(PF.pop(18, [])): ops = f(HR + 8 - i) + ops
    S.place(ops, 72 * 18 + XG0 - 4, 72 * 18 + 59, spread=False)
    for t, fs in PF.items():
        assert len(fs) == 1 and 19 <= t <= 23
        S.place(fs[0](RAW + (t & 1) if t < 23 else TMP + 4), 72 * t + XG0 - 4, 72 * t + 56, spread=False)
    a128, a64, arb = TMP, TMP + 1, TMP + 2
    aq = lambda r: f'a[{r}:{r+3}]'
    vq = lambda r: f'v[{r}:{r+3}]'
    G = lambda x: int(round(72 * x))
    gk = [(g8, k) for g8 in range(4) for k in range(3)]
    kg = [(g8, k) for k in range(3) for g8 in range(4)]
    SP = [float(x) for x in args.stp.split(',')]
    def stores(chunks, bufs, reads, sbase, rowoff, lab, g0, g1):
        ops = []
        for (g8, k), buf, rd in zip(chunks, bufs, reads):
            st = rb_store(buf, sbase, rowoff, g8, k, lab); st[1].notbefore = rd.at + 6
            ops += [st[0], Wait([(lab[0], g8, k)]), st[1]]; ops[-2].notbefore = rd.at + 5
        S.place(ops, g0, g1); return [o for o in ops if isinstance(o, Op) and o.cls == 'st']
    lab = ('Y2', 0)
    b2 = [vq(RAW + 20 + 4 * n) for n in range(4)] + [vq(RAW + 20), vq(RAW + 24)] + [aq(x) for x in (84, 88, 92, 96, 100, 104)]
    if not PL1: b2[6:] = [aq(96 + 4 * n) for n in range(6)]
    r2 = [rb_read(arb, 0, b2[n], *kg[n], lab) for n in range(12)]
    S.place(r2[:4], G(24), G(24) + 14, spread=False)
    d2 = (SP[1] - SP[0]) / 3
    s2 = stores(kg[:4], b2[:4], r2[:4], sOUT, 2 * ROWB, lab, G(SP[0]), G(SP[0] + d2))
    S.place(r2[4:6], s2[1].at + 2, s2[1].at + 20, spread=False)
    S.place(r2[6:], G(25) + 20, G(25) + 59)
    stores(kg[4:], b2[4:], r2[4:], sOUT, 2 * ROWB, lab, G(SP[0] + d2) + 1, G(SP[1]))
    lab = ('Y1', 0)
    pk = []
    for j in range(args.npark): pk += stage_write(a128, a64, 0, j, f'a[{12*j}:{12*j+3}]', f'a[{12*j+4}:{12*j+5}]', lab)
    S.place(pk, G(25) + BG + 2, G(26) + 30)
    b1 = [aq((108 if PL1 else 120) + 4 * n) for n in range(12)]
    r1 = [rb_read(arb if n < 8 else AYR, 0, b1[n], *kg[n], lab) for n in range(12)]
    S.place(r1[:4], G(26) + BG + 2, G(27) + 30); S.place(r1[4:8], G(28) + BG + 2, G(29) + 20); S.place(r1[8:], G(29) + BG + 2, G(30) + 30)
    stores(kg, b1, r1, sOUT, 1 * ROWB, lab, G(SP[1]) + 1, G(SP[2]))
    lab = ('Y0', 0)
    cs = cvt_stage(S3, AY, AY2, Y0U, lab, nb=lambda j: G(29) + max(AL[(j, q)] for q in range(3)) + 6,
                   after0=[A(f'v_mov_b32 v{AY}, v{a128}'), A(f'v_mov_b32 v{AY2}, v{a64}'), A(f'v_mov_b32 v{AYR}, v{arb}')])
    S.place(cs, G(29) + 20, G(30) + 59, spread=False)
    b0 = [aq(4 * n) for n in range(12)]
    r0 = [rb_read(AYR, Y0U, b0[n], *gk[n], lab) for n in range(12)]
    S.place(r0, G(30) + BG + 2, G(33) + 18)
    stores(gk, b0, r0, sOUT, 0, lab, G(SP[2]) + 1, G(SP[3]))
    nb3 = lambda j: G(34) + XAL[j] + (8 if j > 1 or not args.skew else 11)
    lab = ('Y3', 0)
    S.place(cvt_stage(S4, AY, AY2, Y3U, lab, js=range(3), nb=nb3, q2last=True), G(34) + 10, G(34) + B34G - 2, spread=False)
    S.place(cvt_stage(S4, AY, AY2, Y3U, lab, js=range(3, 6), nb=nb3, q2last=True), G(34) + B34G + 1, G(35) + B35G - 2, spread=False)
    S.place(cvt_stage(S4, AY, AY2, Y3U, lab, js=range(6, NJ35), nb=nb3, q2last=True), G(35) + B35G + 1, G(35) + 71, spread=False)
    b3 = [vq(S4 + 4 * n) for n in range(12)]
    r3 = [rb_read(AYR, Y3U, b3[n], *kg[n], lab) for n in range(8)]
    S.place(r3[:4], G(34) + B34G + 1, G(35) + 30, spread=False)
    S.place(r3[4:], G(35) + B35G + 1, G(35) + 70, spread=False)
    stores(kg[:NS35], b3[:NS35], r3[:NS35], sOUT, 3 * ROWB, lab, G(SP[3]) + 1, G(35) + 71)
    lab = ('Y3', -1)
    ops = []
    for n in range(NS35, 8): ops += rb_store(b3[n], sOUT3, 0, *kg[n], lab)
    g = S.place(ops, 0, 21, spread=False) if ops else 0
    S.place(cvt_stage(S4, AY, AY2, Y3U, lab, js=range(NJ35, 8), nb=lambda j: 7, q2last=True), 0, B0G - 2, spread=False)
    r3 = [rb_read(AYR, Y3U, b3[n], *kg[n], lab) for n in range(8, 12)]
    S.place(r3, B0G + 1, 60)
    stores(kg[8:], b3[8:], r3, sOUT3, 0, lab, max(g + 1, B0G + 6), G(args.y3end))
    S.resv = False
    S.place(stage_addr(a128, a64, TMP + 3) + [A(f'v_add_u32 v{arb}, s{sRB}, v{vU}')], G(21) + 2, G(21) + 20, spread=False)
    et = [(j, q) for j in PL0 + [x for x in range(8) if x not in PL0 + PL1] for q in range(3)][:max(0, args.nearly - 3 * len(PL1))]
    et += [(j, q) for j in PL1 for q in range(3)]
    ops = early_ab(et, lambda j, q: G(21) + AL[(j, q)] + 6)
    for j in PL0: ops += even_plain(j, RAW + 12, RAW + 16, OA, lambda j, q: G(23) + AL[(j, q)] + 6)
    if ops:
        ge = S.place(ops, G(21) + 10, G(23) + 71, spread=False); print(f'  early end {ge/72:.2f}')
    g0 = G(24)
    ops = []; wprev = []
    for n, j in enumerate(PL1):
        O = RAW + 6 * ((len(PL1) - 1 - n) & 1)
        w = stage_write(a128, a64, 0, j, f'v[{O}:{O+3}]', f'v[{O+4}:{O+5}]', ('Y2', 0))
        ep = even_plain(j, RAW + 12, RAW + 16, O)
        for o in ep:
            if hasattr(o, 'mark'): o.deadline = G(24) + AF[o.mark[1:]] - 2
        ops += ep + w[::-1]
    if ops: S.place(ops, g0, G(24) + BG - 3, spread=False); g0 = ep[-1].at
    S.place(odd_part(a128, a64, args.npark, G(25) + BG + 1, list(range(8))), g0, G(29) + 59, spread=False)
    M = S.marks
    print('  odd progress', ' '.join(f'{M[("odd",j,2)]/72:.2f}' for j in range(8)))
    owner = lambda buf: divmod((int(buf[2:buf.index(':')]) - 96) // 4, 3)
    for buf, rd in list(zip(b2, r2)) + list(zip(b1, r1)):
        if buf[0] == 'a' and int(buf[2:buf.index(':')]) >= 96: assert M[('odd',) + owner(buf)] < rd.at, buf
    for j in range(args.npark): assert M[('park', j, 2)] < min(pk[2 * j].at, pk[2 * j + 1].at)
    def group(run, g0):
        for p in range(0, 80):
            phi = p / 40
            snap = (list(S.head), [list(x) for x in S.body], {k: list(v) for k, v in S.busy.items()})
            g = g0; ok = True
            for (T, c, h) in run:
                R = rawset(T)
                ad, w = vwrites(R, c, h, int(T > 30), True)
                if T: g = max(g, 72 * (T - 1) + (args.xw if T < 30 else args.xw2))
                if T == 0: w[1].notbefore = B0G + 1
                if T == 31: w[1].notbefore = G(30) + BG + 1
                if T == 16: w[4].notbefore = G(16) + BG + 1
                dl = 72 * (T + 1) + XG0 - 5
                if h == 3 and T < 30: dl = 72 * T + 59
                if T in (32, 33): dl += 72
                if T == 34: dl = G(35) + B35G - 2
                rest = [w[pos] for pos in (2, 3, 0, 5, 4)] + (halo_copy(c, R, int(T > 30)) if h == 1 else [])
                for ops, keep in ((transform(R, ('x', T)) + [ad, w[1]], True), ([A(f'v_lshrrev_b32 v{R + 2 * SLOT[1]}, 15, v{vXW}')] + rest, False)):
                    plan = S.try_place(ops, g + (not keep), dl, 0.0, phi if keep else 0.0)
                    if plan is None: ok = False; break
                    e_ = S.commit(plan)
                    if keep: g = e_
                if not ok: break
            if ok:
                if phi: print(f'  windows {run[0][0]}.. overflow {phi}')
                return g
            S.head, S.body, S.busy = snap
        raise Exception('group')
    if wins:
        g = 0
        for k in range(5): g = group(wins[4 * k:4 * k + 4], g)
        S.place(transform(HR, ('x', 20)) + halo_writes(HR, 1), max(g, G(19) + 50), G(21) + 1, spread=False)
        g = G(args.w31)
        for k in range(20, 24): g = group(wins[k:k + 1], g)
    if 'map' in EXP:
        sym = {'l4': 'U', 'l2': 'x', 'st': 'S', 'w8': 'w', 'w16': 'W', 'r': 'r', 'bar': 'B', 's': '.', 'l0': ':'}
        for t in range(36):
            print(f'{t:2d} ' + ''.join((sym[S.head[g].cls] if S.head[g] is not None else ' ') for g in range(72 * t, 72 * t + 72)) + '|')
            print('   ' + ''.join(str(len(S.body[g])) if S.body[g] else ' ' for g in range(72 * t, 72 * t + 72)) + '|')
    return S

def emit_body(E, S):
    E.nsince = 0
    for t in range(36):
        if t == 24 and 'noburst' not in EXP: burst(E)
        ml = mfma_list(t)
        if getattr(E, 'labels', False): E.raw(f'sub{t}:')
        for m in range(72):
            E.op(ml[m])
            g = 72 * t + m
            if args.fine >= 0 and m == 0: E.e(('s_memrealtime' if args.rt else 's_memtime') + ' s[98:99]')
            if args.fine >= 0 and m == 40:
                E.e(f's_cmp_eq_u32 s{sGEN}, {args.fine}'); E.e(f's_cselect_b32 s{60+t}, s98, s{60+t}')
            if S.head[g] is not None: E.op(S.head[g])
            for o in S.body[g]: E.op(o)

def srd(E, d, b, n):
    E.e(f's_mov_b32 s{d}, s{b}'); E.e(f's_and_b32 s{d+1}, s{b+1}, 0xffff')
    E.e(f's_mov_b32 s{d+2}, {n}'); E.e(f's_mov_b32 s{d+3}, 0x20000')

NWT = 54
WPART = 12288 if 'fullline' in EXP else 1536
PADS = 'nopads' not in EXP
def PS(E, k):
    if args.pro:
        E.e('s_memtime s[94:95]'); E.e('s_waitcnt lgkmcnt(0)'); E.e('s_sub_u32 s94, s94, s96'); E.e(f'v_writelane_b32 v90, s94, {k}')
def wt_task(E):
    wt_addr(E); wt_loads(E); E.e('s_waitcnt vmcnt(0)'); wt_comp(E)
def wt_addr(E):
    e = E.e
    e('s_mul_i32 s73, s70, 43691'); e('s_lshr_b32 s73, s73, 17')
    e('s_mul_i32 s74, s73, 3'); e('s_sub_u32 s74, s70, s74')
    e('s_mul_i32 s75, s73, 43691'); e('s_lshr_b32 s75, s75, 17')
    e('s_mul_i32 s76, s75, 3'); e('s_sub_u32 s76, s73, s76')
    e('v_and_b32 v101, 14, v2'); e('v_lshrrev_b32 v102, 4, v2'); e('v_and_b32 v103, 12, v101'); e('v_and_b32 v105, 1, v2')
    e('s_lshl_b32 s78, s74, 2'); e('s_cmp_lt_u32 s74, 2'); e('s_cselect_b32 s77, 1, 0'); e('s_cselect_b32 s78, s78, 32')
    e('v_mul_u32_u24 v103, s77, v103'); e('v_add_u32 v103, v103, v101'); e('v_add_u32 v103, s78, v103')
    e(f'v_lshl_add_u32 v103, v103, 1, s{sW96}')
    e('v_lshl_add_u32 v102, v102, 1, v105'); e('v_mul_u32_u24 v104, 1536, v102'); e('v_add_u32 v103, v103, v104')
    e('s_mul_i32 s79, s76, 73728'); e('s_mul_i32 s80, s75, 12288'); e('s_add_u32 s79, s79, s80')
    e('s_add_u32 s80, s79, 221184'); e('s_add_u32 s81, s79, 442368')
def wt_loads(E):
    e = E.e
    for r in range(3):
        for k in range(4):
            e(f'buffer_load_dword v{136+r*4+k}, v103, s[60:63], s{79+r} offen offset:{k*384}')
    e('v_mul_u32_u24 v106, 0x0202, v105'); e('v_sub_u32 v106, 0x0504, v106'); e('v_mul_u32_u24 v107, 0x0606, v105'); e('v_add_u32 v107, 0x0100, v107')
    e('v_mov_b32 v108, 0x0c0c'); e('v_lshl_or_b32 v106, v106, 16, v108'); e('v_lshl_or_b32 v107, v107, 16, v108')
    e('s_mul_i32 s82, s76, 3072'); e('s_lshl_b32 s83, s74, 10'); e('s_add_u32 s82, s82, s83')
    e('s_mul_i32 s83, s75, 36864'); e('s_lshl_b32 s84, s83, 2'); e('s_add_u32 s83, s83, s82'); e('s_add_u32 s84, s84, s82')
def wt_comp(E):
    e = E.e
    for i in range(12): e(f'v_mov_b32_dpp v{152+i}, v{136+i} quad_perm:[1,0,3,2] row_mask:0xf bank_mask:0xf')
    for r in range(3):
        for k in range(4):
            e(f'v_perm_b32 v{110+r*8+k}, v{136+r*4+k}, v{152+r*4+k}, v106'); e(f'v_perm_b32 v{110+r*8+4+k}, v{136+r*4+k}, v{152+r*4+k}, v107')
    f1 = 2 * P * P * (P * P - Q * Q); f3 = 2 * Q * Q * (Q * Q - P * P)
    al, be = Fr(1), Q ** 2
    def put(pos, src):
        O = 152 + 4 * pos
        for k in range(4): e(f'v_cvt_pk_bf16_f32 v{O+k}, v{src+2*k}, v{src+2*k+1}')
        if pos == 0: e(f's_add_u32 s85, s83, {24*36864}')
        elif pos == 5: e(f's_add_u32 s85, s83, {30*36864}')
        else: e(f's_add_u32 s85, s84, {(pos-1)*36864}')
        e(f'buffer_store_dwordx4 v[{O}:{O+3}], v{vU}, s[8:11], s85 offen sc1')
    for (pos, g, z) in ((1, al / f1, P), (3, be / f3, Q)):
        for k in range(8):
            e(f'v_mul_f32 v{136+k}, {f32(g)}, v{110+k}'); e(f'v_fmac_f32 v{136+k}, {f32(g*z*z)}, v{126+k}')
            e(f'v_fmamk_f32 v{144+k}, v{118+k}, {f32(g*z)}, v{136+k}'); e(f'v_fmac_f32 v{136+k}, {f32(-g*z)}, v{118+k}')
        put(pos, 144); put(pos + 1, 136)
    put(0, 110); put(5, 126)

KN = 'standalone__winograd__vision_kernel'
def main_kernel(E):
    e = E.e
    E.raw(f""".globl {KN}
.p2align 8
.type {KN},@function
{KN}:""")
    i0 = len(E.L); E.lds = verify.Lds()
    e('s_cmp_ge_u32 s2, 256'); e('s_cbranch_scc1 main_done')
    e('s_load_dwordx2 s[60:61], s[0:1], 8'); e('s_load_dwordx2 s[4:5], s[0:1], 0'); e('s_load_dwordx4 s[12:15], s[0:1], 16'); e('s_load_dwordx2 s[8:9], s[0:1], 32')
    if STAMP: e(f'{"s_memrealtime" if args.rt else "s_memtime"} s[96:97]'); e('s_memrealtime s[98:99]')
    if args.fine >= 0: e(('s_memrealtime' if args.rt else 's_memtime') + ' s[96:97]'); e('s_memrealtime s[98:99]'); e('s_waitcnt lgkmcnt(0)'); e('s_mov_b32 s97, s98')
    if args.span: e('s_memrealtime s[98:99]')
    if 'nocpf' not in EXP:
        e('s_getpc_b64 s[92:93]'); E.raw('pcref:')
        e('v_and_b32 v70, 3, v0'); e('v_lshrrev_b32 v71, 6, v0'); e('v_lshl_add_u32 v70, v70, 7, v71')
        e('s_lshr_b32 s94, s2, 3'); e('s_lshl_b32 s94, s94, 2'); e('v_add_lshl_u32 v70, v70, s94, 7')
        e('v_min_u32 v70, code_end-pcref-4, v70')
        e('v_add_co_u32 v72, vcc, s92, v70'); e('v_mov_b32 v73, s93'); e('s_nop 0'); e('v_addc_co_u32 v73, vcc, 0, v73, vcc')
        E.op(VM('global_load_dword v76, v[72:73], off', 'c'))
    e('v_lshrrev_b32 v1, 6, v0'); e('v_and_b32 v2, 63, v0')
    e(f'v_readfirstlane_b32 s{sW}, v1')
    nwt = 0 if "forcefb" in EXP else NWT
    if args.pro: e('v_mov_b32 v90, 0')
    e(f's_mov_b32 s62, {WB}'); e('s_mov_b32 s63, 0x20000'); e('s_mov_b32 s70, s2'); e(f's_mul_i32 s{sW96}, s{sW}, 96')
    def wl():
        wt_addr(E)
        e('s_waitcnt lgkmcnt(0)'); e('s_and_b32 s61, s61, 0xffff')
        wt_loads(E); PS(E, 1)
    if 'xfirst' in EXP: e(f's_cmp_lt_u32 s2, {nwt}'); e('s_cbranch_scc1 wl_far')
    else: e(f's_cmp_ge_u32 s2, {nwt}'); e('s_cbranch_scc1 wl_skip'); wl()
    E.raw('wl_skip:')
    e(f'v_lshlrev_b32 v{vU}, 4, v2'); e('v_mov_b32 v98, 0')
    e('v_lshrrev_b32 v3, 3, v2'); e('v_and_b32 v4, 7, v2')
    e('v_mul_u32_u24 v5, 3072, v3'); e(f'v_lshl_add_u32 v{vXW}, v4, 3, v5')
    if 'fullline' in EXP: e('v_lshrrev_b32 v5, 4, v2'); e('v_mul_u32_u24 v5, 3072, v5'); e('v_and_b32 v6, 15, v2'); e(f'v_lshl_add_u32 v{vXW}, v6, 3, v5')
    e(f's_lshr_b32 s{sT2}, s2, 3'); e(f's_and_b32 s{sCB}, s{sT2}, 3'); e(f's_lshr_b32 s{sT2}, s{sT2}, 2')
    e(f's_and_b32 s{sTR}, s2, 7'); e(f's_lshl_b32 s{sTR}, s{sTR}, 4'); e(f's_add_u32 s{sTR}, s{sTR}, s{sT2}')
    e(f's_and_b32 s90, s{sW}, 1'); e(f's_lshr_b32 s91, s{sW}, 1')
    e(f's_mul_i32 s{sH}, s90, 24576'); e(f's_mul_i32 s{sT3}, s91, {WPART}'); e(f's_add_u32 s{sH}, s{sH}, s{sT3}')
    if args.rot: e(f's_and_b32 s{sT3}, s{sTR}, 1'); e(f's_mul_i32 s{sT3}, s{sT3}, {384*args.rot}'); e(f's_add_u32 s{sH}, s{sH}, s{sT3}')
    e(f's_mul_i32 s{sPFD}, s{sW}, {ROWB}'); e(f's_sub_u32 s{sPFD}, s{sPFD}, s{sH}')
    e(f's_mul_i32 s{sWP}, s{sCB}, 49152'); e(f's_add_u32 s{sWP}, s{sWP}, s{sH}')
    E.op(rows_setup())
    e(f'v_mov_b32 v80, v{vXW}'); e(f's_mov_b32 s6, {XB}'); e('s_mov_b32 s7, 0x20000')
    PR = [8 + 12 * i for i in range(5)]
    poll = lambda: E.op(VM('buffer_load_dword v97, v98, s[64:67], 0 offen offset:128 sc1', 'poll'))
    def xl(h):
        for r in range(6):
            E.op(VM(f'buffer_load_dwordx2 v[{PR[h]+2*r}:{PR[h]+2*r+1}], v80, s[4:7], s{sROW+r} offen offset:{h*384}', ('p', h)))
    def srds():
        e('s_and_b32 s61, s61, 0xffff'); e(f's_mul_i32 s{sT2}, s{sW}, 9216')
        e(f's_add_u32 s8, s8, s{sT2}'); e('s_addc_u32 s9, s9, 0')
        e('s_and_b32 s9, s9, 0xffff'); e(f's_mov_b32 s10, {UB-3*9216}'); e('s_mov_b32 s11, 0x20000')
        srd(E, 64, 14, 256); e('s_mov_b64 s[68:69], s[14:15]')
    e('s_waitcnt lgkmcnt(0)')
    PS(E, 0)
    e('s_and_b32 s5, s5, 0xffff')
    if args.span: e('s_mov_b64 s[68:69], s[14:15]')
    if args.span:
        e(f's_cmp_lg_u32 s{sW}, 0'); e('s_cbranch_scc1 sp_skip')
        e('s_not_b32 s99, s98'); e('s_atomic_umax s98, s[68:69], 64'); e('s_atomic_umax s99, s[68:69], 68')
        E.raw('sp_skip:')
    e(f's_cmp_lt_u32 s2, {nwt}'); e('s_cbranch_scc1 wt_path')
    E.vm = []
    if args.xdelay:
        e(f's_lshr_b32 s73, s2, 3'); e(f's_cmp_ge_u32 s73, {args.xdn}'); e('s_cbranch_scc1 nodelay'); e(f's_sleep {args.xdelay}'); E.raw('nodelay:')
    def helper():
        e('s_lshr_b32 s73, s2, 3'); e('s_sub_u32 s73, s73, 7'); e('s_lshl_b32 s74, s73, 2'); e(f's_add_u32 s74, s74, s{sW}')
        e('s_and_b32 s75, s2, 7'); e('s_lshl_b32 s75, s75, 9'); e('s_add_u32 s74, s74, s75'); e('s_mul_i32 s74, s74, 24576')
        e('s_cmp_lt_u32 s73, 18'); e(f's_cselect_b32 s74, s74, {OOB}'); e(f'v_mul_u32_u24 v81, 24, v{vU}')
        e('buffer_load_dword v81, v81, s[4:7], s74 offen')
    if args.help_at == 0: helper()
    xl(0)
    if args.help_at == 1: helper()
    xl(1)
    if args.help_at == 2: helper()
    srds()
    e('s_branch wt_join')
    if 'xfirst' in EXP: E.raw('wl_far:'); wl(); e('s_branch wl_skip')
    E.raw('wt_path:')
    vm0 = list(E.vm)
    srds()
    e('s_waitcnt vmcnt(0)'); PS(E, 2)
    wt_comp(E); PS(E, 3)
    if 'publate' in EXP: xl(0)
    E.raw('wt_join:')
    E.vm = list(vm0)
    PS(E, 5)
    e('s_and_b32 s13, s13, 0xffff'); e(f's_mov_b32 s14, {XB}'); e('s_mov_b32 s15, 0x20000')
    e('v_lshrrev_b32 v5, 4, v2'); e(f'v_mul_u32_u24 v6, {PLS}, v5'); e('v_lshrrev_b32 v5, 1, v5')
    e('v_lshl_add_u32 v6, v5, 6, v6'); e(f'v_and_b32 v5, 0xf0, v{vU}'); e(f'v_add_u32 v{vR}, v6, v5')
    e('v_lshrrev_b32 v6, 1, v4'); e(f'v_mul_u32_u24 v7, {PLS}, v6'); e('v_lshrrev_b32 v6, 1, v6'); e('v_lshl_add_u32 v7, v6, 6, v7')
    e('v_and_b32 v6, 1, v2'); e('v_lshl_add_u32 v7, v6, 3, v7'); e('v_lshl_add_u32 v7, v3, 4, v7')
    e(f's_lshl_b32 s{sT2}, s90, 7'); e(f's_mul_i32 s{sT3}, s91, 1056'); e(f's_add_u32 s{sT2}, s{sT2}, s{sT3}')
    e(f'v_add_u32 v7, s{sT2}, v7'); e(f'v_lshl_or_b32 v{vXW}, v7, 15, v{vXW}')
    e(f's_mul_i32 s{sRB}, s{sW}, {PLS}'); e(f's_lshl_b32 s{sT3}, s91, 6'); e(f's_add_u32 s{sRB}, s{sRB}, s{sT3}')
    e(f's_lshl_b32 s{sT3}, s90, 4'); e(f's_add_u32 s{sRB}, s{sRB}, s{sT3}')
    e(f's_mul_i32 s{sOUT}, s{sTR}, {4*ROWB}'); e(f's_mul_i32 s{sT3}, s{sCB}, 49152'); e(f's_add_u32 s{sOUT}, s{sOUT}, s{sT3}')
    e(f's_mul_i32 s{sT3}, s{sW}, 12288'); e(f's_add_u32 s{sOUT}, s{sOUT}, s{sT3}')
    e(f's_mov_b32 s{sOUT3}, {OOB}'); e(f's_mov_b32 s{sGEN}, 0'); e(f's_mov_b32 s{sUW}, 0')
    e(f's_lshl_b32 s{sT3}, s{sW}, 4'); e(f's_mov_b32 s{sEXM}, 0xfff'); e(f's_mov_b32 s{sEXM+1}, 0'); e(f's_lshl_b64 s[{sEXM}:{sEXM+1}], s[{sEXM}:{sEXM+1}], s{sT3}')
    e('s_mov_b32 s58, 0x0fff0fff'); e('s_mov_b32 s59, 0')
    for r, v in ((sNSIG, -SIG), (sNP2, -P * P), (sIK, 1 / KAP), (sP, P), (sNP, -P), (sNSK, -SIG / KAP), (sK, KAP),
                 (sP2, P * P), (sQT, 1 / (Q * Q)), (s2P, 2 * P), (sP3h, P ** 3 / 2)):
        e(f's_mov_b32 s{r}, {f32(v)}')
    e(f's_mov_b32 s{sMASK}, 0xffff0000')
    if args.upf: e(f's_lshr_b32 s{sUP}, s2, 3'); e(f's_lshl_b32 s{sUP}, s{sUP}, 9'); e(f's_mul_i32 s3, s{sW}, {9216-128}'); e(f's_sub_u32 s{sUP}, s{sUP}, s3'); e(f'v_mov_b32 v{RAW+10}, 0'); e(f'v_mov_b32 v{RAW+22}, 0'); e(f'v_mov_b32 v{RAW+34}, 0')
    e(f's_and_b32 s{sT3}, s{sTR}, 7'); e(f's_cmp_eq_u32 s{sT3}, 0'); e(f's_cselect_b32 s{sPED}, {-ROWB & 0xffffffff}, 0x40000000')
    e(f's_cmp_eq_u32 s{sT3}, 7'); e(f's_cselect_b32 s{sPED}, {4*ROWB}, s{sPED}')
    e(f's_mul_i32 s{sT3}, s{sW}, {ROWB-384}'); e(f's_sub_u32 s{sT3}, s{sPFD}, s{sT3}'); e(f's_add_u32 s{sPED}, s{sPED}, s{sT3}'); e(f's_mov_b32 s{sPE}, {OOB}')
    E.op(stage_addr(AY, AY2, AYR)); e(f'v_add_u32 v{AYR}, s{sRB}, v{vU}')
    if PADS:
        for r in [RAW, RAW + 1, RAW + 11, RAW + 23, RAW + 32, RAW + 35, TMP + 4]: e(f'v_mov_b32 v{r}, 0')
        e(f's_mov_b32 s{sT0}, 0')
    e(f's_cmp_gt_u32 s{sCB}, 0'); e(f's_cselect_b32 s{sT3}, 384, 0'); e(f's_cselect_b32 s{sT4+1}, 0, {OOB}')
    e(f's_add_u32 s{sH}, s{sH}, s{sT3}'); e(f's_add_u32 s{sT4}, s{sT3}, 49152')
    e(f's_cmp_eq_u32 s{sCB}, 3'); e(f's_cselect_b32 s{sT4}, {OOB}, s{sT4}')
    e('s_mov_b32 s56, 0xffff0000'); e('s_mov_b32 s57, 0')
    e(f's_cmp_ge_u32 s2, {nwt}'); e('s_cbranch_scc1 pub_skip')
    if PADS: e('s_branch do_warm'); E.raw('wt_ret:')
    e('s_mov_b32 s87, 1'); e(f's_cmp_lg_u32 s{sW}, 0')
    e(f's_waitcnt vmcnt({6 if "ack6" in EXP else 0})'); e('s_barrier'); e('s_cbranch_scc1 wt_pub')
    e('s_atomic_add s87, s[68:69], 0 glc'); e('s_waitcnt lgkmcnt(0)'); PS(E, 4)
    e(f's_cmp_lg_u32 s87, {NWT-1}'); e('s_cbranch_scc1 wt_pub')
    e('s_atomic_add s87, s[68:69], 128')
    E.raw('wt_pub:')
    if 'publate' not in EXP: xl(0)
    xl(1); E.vm = list(vm0)
    E.raw('pub_skip:')
    PS(E, 6)
    if 'halolast' not in EXP: E.op(halo_loads(PR[4], 'ph'))
    for h in range(2, 4): xl(h)
    if 'halolast' in EXP: E.op(halo_loads(PR[4], 'ph'))
    PS(E, 7)
    def mix(main, side, every):
        side = list(side)
        for i, o in enumerate(main):
            E.op(o)
            if side and i % every == every - 1: E.op(side.pop(0))
        E.op(side)
    def task(h):
        ad, w = vwrites(PR[h], 0, h)
        return transform_pk(PR[h], ('p', h), 176) + [ad] + [w[pos] for pos in range(6)]
    def ul(t): return [([usoff(t, i // 3)] if i % 3 == 0 else []) + [uload(t, i // 3, i % 3)] for i in range(9)]
    def xw(T):
        o = xloads(RAW + 12 * T, 1, T, ('x', T)); return [o[:2]] + o[2:]
    def warm():
        if not PADS: return
        e(f's_cmp_lt_u32 s2, {nwt}'); e('s_cbranch_scc1 warm_done')
        E.raw('do_warm:')
        e('s_mov_b64 vcc, -1')
        for k in range(3): e(f's_cmp_eq_u32 s{sW}, {k}'); e(f's_cbranch_scc1 pad{k}')
        e('s_branch pad3')
        E.raw('warm_ret:'); e('s_mov_b64 vcc, 0')
        e(f's_cmp_lt_u32 s2, {nwt}'); e('s_cbranch_scc1 wt_ret')
        E.raw('warm_done:')
    assert args.uearly
    E.op(task(0)); PS(E, 8); E.op(task(1)); PS(E, 9)
    E.op(transform_pk(PR[4], 'ph', 176)); E.op(halo_writes(PR[4], 0, True))
    if args.simple:
        assert args.x1in2
        t2 = task(2)
        if args.simple == 1: E.op(xw(0) + xw(1)); E.op(t2); PS(E, 10); E.op(task(3)); poll()
        else: mix(t2, xw(0), args.mix2); PS(E, 10); t3 = task(3); E.op(t3[0]); poll(); mix(t3[1:], xw(1), args.mix2)
        PS(E, 11); warm(); e('s_mov_b32 s86, 0')
    else:
        if not args.warmlate: warm()
        t2 = task(2)
        E.op(t2[0]); poll(); mix(t2[1:], xw(0) + (xw(1) if args.x1in2 else []), args.mix2); PS(E, 10)
        e('s_mov_b32 s86, 0')
        E.op(Wait(['poll'])); e('v_readfirstlane_b32 s87, v97'); PS(E, 12); e('s_nop 0'); e('s_cmp_eq_u32 s87, 0'); e('s_cbranch_scc1 not_yet')
        vm1 = list(E.vm); lg1 = list(E.lg); lds_ = E.lds; E.lds = None
        mix(task(3), ul(0), args.mix3); PS(E, 11)
        e('s_branch u_done')
        E.raw('not_yet:')
        E.vm = vm1; E.lg = lg1; E.lds = lds_
        poll(); E.op(task(3)); PS(E, 11)
    E.op(Wait(['poll']))
    PS(E, 13)
    E.raw('poll_loop:')
    e('v_readfirstlane_b32 s87, v97'); e('s_add_u32 s86, s86, 1')
    e('s_cmp_lg_u32 s87, 0'); e('s_cbranch_scc1 u_ready')
    e('buffer_load_dword v97, v98, s[64:67], 0 offen offset:128 sc1')
    e('s_cmp_lt_u32 s86, 512'); e('s_waitcnt vmcnt(0)'); e('s_cbranch_scc1 poll_loop')
    e('s_mov_b32 s70, 0'); e('s_branch wt_loop')
    E.raw('u_ready:')
    PS(E, 14)
    E.op(ul(0))
    E.raw('u_done:')
    if args.pro: e('v_writelane_b32 v90, s86, 17')
    rest = ([] if args.x1in2 else xw(1)) + ul(1)
    E.op(rest[:args.prebar])
    if args.warmlate and not args.simple: warm()
    E.op(Bar())
    for F in range(3): E.op(vread(F))
    E.op(rest[args.prebar:])
    E.op(Stamp(0))
    for i in range(args.idle): e('s_sleep 37')
    PS(E, 15)
    pro_vm = list(E.vm); iw = len(E.L); e('s_waitcnt vmcnt(0) lgkmcnt(0)')
    if args.pro:
        PS(E, 16)
        e('s_mov_b32 s10, 0x400000'); e('s_lshl_b32 s94, s2, 10'); e('s_add_u32 s94, s94, 0x300000'); e(f's_mul_i32 s95, s{sW}, {9216-256}'); e('s_sub_u32 s94, s94, s95')
        e(f'v_lshrrev_b32 v91, 2, v{vU}'); e('buffer_store_dword v90, v91, s[8:11], s94 offen'); e('s_waitcnt vmcnt(0)'); e(f's_mov_b32 s10, {UB-3*9216}')
    S = build_body()
    E2 = Emit(); emit_body(E2, S)
    E.vm = list(E2.vm); E.lg = list(E2.lg); st = (list(E.vm), list(E.lg)); E.late = 0
    k = 9 if args.x1in2 else 15; assert all(t[:2] in (('U', 1), ('x', 1)) for t in pro_vm[-k:])
    E.L[iw] = f'    s_waitcnt vmcnt({k}) lgkmcnt(0)'
    print('entry vmcnt', k)
    lds = E.lds; E.lds = None
    if PADS: e('s_branch blk_loop'); E.raw('.p2align 12')
    else: E.raw('.p2align 6')
    E.raw('blk_loop:'); i1 = len(E.L)
    E.labels = True
    emit_body(E, S)
    print('late (unplanned) waits in body:', E.late)
    assert (E.vm, E.lg) == st, (E.vm, st)
    e(f's_add_u32 s{sOUT3}, s{sOUT}, {3*ROWB}'); e(f's_add_u32 s{sOUT}, s{sOUT}, {32*ROWB}')
    e(f's_add_u32 s{sGEN}, s{sGEN}, 1'); e(f's_cmp_lt_u32 s{sGEN}, 2'); e('s_cbranch_scc1 blk_loop')
    def tail(E):
        SPOL['Y3'] = SPOL['T']
        lab = ('Y3', -1)
        kg = [(g8, k) for k in range(3) for g8 in range(4)]
        buf = lambda n: f'v[{S3+16+4*(n-4)}:{S3+16+4*(n-4)+3}]'
        for n in range(NS35, 8): E.op(rb_store(f'v[{S4+4*n}:{S4+4*n+3}]', sOUT3, 0, *kg[n], lab))
        if NS35 == 8: E.e('s_nop 3')
        E.op(cvt_stage(S4, AY, AY2, Y3U, lab, js=range(NJ35, 8), q2last=True))
        E.op(Bar()); lo = 8
        for n in range(lo, 12): E.op(rb_read(AYR, Y3U, buf(n), *kg[n], lab))
        for n in range(lo, 12): E.op(rb_store(buf(n), sOUT3, 0, *kg[n], lab))
    i2 = len(E.L)
    V = Emit(); V.lds = lds; V.vm = list(E.vm); V.lg = list(E.lg)
    V.blk = 0; emit_body(V, S); V.blk = 1; emit_body(V, S); V.blk = 2; tail(V)
    tail(E)
    errs = verify.check(E.L[i0:i2] + E.L[i1:]) + lds.errs
    for x in errs[:30]: print('VERIFY:', x)
    print('verify errors:', len(errs))
    if STAMP:
        e('s_waitcnt vmcnt(0)')
        e(f'{"s_memrealtime" if args.rt else "s_memtime"} s[92:93]'); e('s_memrealtime s[94:95]')
        e('s_load_dwordx2 s[16:17], s[0:1], 24'); e('s_waitcnt lgkmcnt(0)')
        e(f's_cmp_lg_u32 s2, {args.fwg}'); e('s_cbranch_scc1 main_done'); e(f's_cmp_lg_u32 s{sW}, 0'); e('s_cbranch_scc1 main_done')
        srd(E, 4, 16, 256)
        e('v_mov_b32 v1, 0')
        n = len(BARS) + 1
        def put(k):
            e(f'v_mov_b32 v2, s{sT0}'); e(f'buffer_store_dword v2, v1, s[4:7], 0 offen offset:{4*k}')
            if k == args.probe: e(f's_mov_b32 s{sT1}, s{sT0}')
        e(f's_sub_u32 s{sT0}, s92, s96'); put(0)
        e(f's_sub_u32 s{sT0}, s94, s98'); put(1)
        e(f's_sub_u32 s{sT0}, s60, s96'); put(2)
        e(f's_sub_u32 s{sT0}, s62, s60'); put(3)
        for k in range(2, n):
            e(f's_sub_u32 s{sT0}, s{60+2*k}, s{60+2*(k-1)}'); put(2 + k)
        e(f's_sub_u32 s{sT0}, s92, s{60+2*(n-1)}'); put(2 + n)
        if args.probe >= 0:
            e(f's_min_u32 s{sT1}, s{sT1}, 400000')
            if args.rt: e(f's_min_u32 s{sT1}, s{sT1}, 20000'); e(f's_lshl_b32 s{sT1}, s{sT1}, 3')
            else: e(f's_lshr_b32 s{sT1}, s{sT1}, 2'); e(f's_mul_i32 s{sT1}, s{sT1}, 1638'); e(f's_lshr_b32 s{sT1}, s{sT1}, 10')
            E.raw('spin:'); e('s_memrealtime s[90:91]'); e('s_waitcnt lgkmcnt(0)'); e('s_sub_u32 s90, s90, s94'); e(f's_cmp_lt_u32 s90, s{sT1}'); e('s_cbranch_scc1 spin')
    if args.fine >= 0:
        e('s_waitcnt vmcnt(0)'); e(('s_memrealtime' if args.rt else 's_memtime') + ' s[98:99]'); e('s_memrealtime s[56:57]')
        e('s_load_dwordx2 s[16:17], s[0:1], 32'); e('s_waitcnt lgkmcnt(0)')
        e(f's_cmp_lg_u32 s{sW}, 0'); e('s_cbranch_scc1 main_done')
        srd(E, 4, 16, 0x400000)
        e('s_lshl_b32 s16, s2, 8'); e('s_add_u32 s16, s16, 0x200000'); e('v_mov_b32 v1, 0')
        for k in range(41):
            if k == 0: e(f's_sub_u32 s{sT0}, s60, s96')
            elif k < 36: e(f's_sub_u32 s{sT0}, s{60+k}, s{59+k}')
            elif k == 36: e(f's_sub_u32 s{sT0}, s98, s95')
            elif k == 37: e(f's_sub_u32 s{sT0}, s98, s96')
            elif k == 38: e(f's_mov_b32 s{sT0}, s97')
            elif k == 39: e(f's_mov_b32 s{sT0}, s56')
            elif k == 40: e(f's_getreg_b32 s{sT0}, hwreg(HW_REG_XCC_ID)')
            e(f'v_mov_b32 v2, s{sT0}'); e(f'buffer_store_dword v2, v1, s[4:7], s16 offen offset:{4*k}')
    if args.span:
        e('s_waitcnt vmcnt(0)'); e('s_memrealtime s[94:95]'); e('s_waitcnt lgkmcnt(0)')
        e('s_mov_b32 s96, s94'); e('s_atomic_umax s96, s[68:69], 72'); e('s_waitcnt lgkmcnt(0)')
        e('s_cmp_lg_u32 s2, 100'); e('s_cbranch_scc1 main_done'); e(f's_cmp_lg_u32 s{sW}, 0'); e('s_cbranch_scc1 main_done')
        E.raw('spin1:'); e('s_memrealtime s[90:91]'); e('s_waitcnt lgkmcnt(0)'); e('s_sub_u32 s90, s90, s94'); e('s_cmp_lt_u32 s90, 1500'); e('s_cbranch_scc1 spin1')
        e('s_load_dwordx4 s[84:87], s[68:69], 64 glc'); e('s_waitcnt lgkmcnt(0)'); e('s_not_b32 s85, s85')
        if args.span == 1: e('s_sub_u32 s84, s84, s85')
        elif args.span == 2: e('s_sub_u32 s84, s86, s85')
        else: e('s_mov_b32 s84, 0')
        e('s_min_u32 s84, s84, 20000'); e('s_lshl_b32 s84, s84, 3'); e('s_add_u32 s84, s84, 12000')
        E.raw('spin2:'); e('s_memrealtime s[90:91]'); e('s_waitcnt lgkmcnt(0)'); e('s_sub_u32 s90, s90, s85'); e('s_cmp_lt_u32 s90, s84'); e('s_cbranch_scc1 spin2')
    E.raw('main_done:'); e('s_endpgm')
    E.raw('code_end:')
    E.raw('wt_loop:')
    wt_task(E)
    e('s_add_u32 s70, s70, 1'); e(f's_cmp_lt_u32 s70, {NWT}'); e('s_cbranch_scc1 wt_loop')
    e('s_waitcnt vmcnt(0)'); e('s_branch u_ready')
    return S

def kd(name, vg, acc_off, sg):
    return f""".amdhsa_kernel {name}
  .amdhsa_next_free_vgpr {vg}
  .amdhsa_next_free_sgpr {sg}
  .amdhsa_accum_offset {acc_off}
  .amdhsa_group_segment_fixed_size 0
  .amdhsa_kernarg_size 40
  .amdhsa_user_sgpr_count 2
  .amdhsa_user_sgpr_kernarg_segment_ptr 1
  .amdhsa_system_sgpr_workgroup_id_x 1
  .amdhsa_ieee_mode 0
.end_amdhsa_kernel"""

def add_pads(E):
    import subprocess, re, tempfile
    i1 = E.L.index('blk_loop:'); i2 = E.L.index('main_done:')
    tmp = tempfile.mkdtemp()
    txt = '\n'.join(l for l in E.L if l != '.p2align 3') + '\n.text\n' + ''.join(f'pad{k}:\n' for k in range(4))
    open(tmp + '/a.s', 'w').write(txt)
    subprocess.run(['clang', '-x', 'assembler', '-target', 'amdgcn-amd-amdhsa', '-mcpu=gfx950', '-c', tmp + '/a.s', '-o', tmp + '/a.o'], check=True)
    dis = subprocess.run(['llvm-objdump', '-d', '--mcpu=gfx950', tmp + '/a.o'], capture_output=True, text=True).stdout
    dis = dis[dis.index('<blk_loop>:' if '<blk_loop>:' in dis else '<sub0>:'):]
    sizes = [4 * len(m.group(1).split()) for m in re.finditer(r'// [0-9A-F]{12}: ((?:[0-9A-F]{8} ?)+)', dis)]
    out = []; addr = 0; n = 0; pads = []; want = 0; inburst = False
    for l in E.L[i1 + 1:i2]:
        if l == '.p2align 3':
            if addr % 8: out.append('    s_nop 0'); addr += 4
            inburst = True
            continue
        out.append(l)
        if not l.startswith('    '): continue
        addr += sizes[n]; n += 1
        mf = l.strip().startswith('v_mfma')
        if mf: inburst = False
        if addr >= want and (mf or inburst):
            pads.append(len(out)); out.append(None); addr += 4
            if inburst: out.append('    s_nop 0'); addr += 4
            want += 4096
    for k, i in enumerate(pads):
        out[i] = f'pad{k}:\n    s_cbranch_vccnz ' + (f'pad{k+4}' if k + 4 < len(pads) else 'warm_ret')
    E.L[i1 + 1:i2] = out
    print('pads', len(pads), 'loop+tail bytes', addr)

def main():
    E = Emit()
    E.raw("""; 3x3 conv via 1D Winograd F(4,3) along H + direct taps along W (generated by gen/gen11.py)
; @launch grid=(256,1,1) block=(256,1,1) lds=163840
.amdgcn_target "amdgcn-amd-amdhsa--gfx950"
.text""")
    load = main_kernel(E)
    E.raw('.section .rodata,"a"\n.p2align 6')
    E.raw(kd(KN, 512, 256, 102))
    if PADS: add_pads(E)
    open(args.out, 'w').write('\n'.join(E.L) + '\n')
    print(' '.join(f'{t}:{load.cycles(t)}' for t in range(36)), ' total', sum(load.cycles(t) for t in range(36)))
main()
```

```python
import sys, struct, argparse, os
sys.path.insert(0, os.path.dirname(os.path.abspath(__file__)))
import verify
from fractions import Fraction as Fr

ap = argparse.ArgumentParser()
ap.add_argument('out', nargs='?', default='standalone__winograd__vision.s')
ap.add_argument('--stamp', action='store_true')
ap.add_argument('--pro', action='store_true')
ap.add_argument('--help_at', type=int, default=9)
ap.add_argument('--early', type=int, default=9)
ap.add_argument('--haloat', type=int, default=1)
ap.add_argument('--span', type=int, default=0)
ap.add_argument('--rt', action='store_true')
ap.add_argument('--psleep', type=int, default=0)
ap.add_argument('--xdelay', type=int, default=0)
ap.add_argument('--idle', type=int, default=0)
ap.add_argument('--idle2', type=int, default=0)
ap.add_argument('--fine', type=int, default=-1)
ap.add_argument('--fwg', type=int, default=0)
ap.add_argument('--exp', default='')
ap.add_argument('--upol', default=' sc1')
ap.add_argument('--xpol', default='')
ap.add_argument('--xpol2', default='')
ap.add_argument('--xr2', default='012345')
ap.add_argument('--spol', default=' sc1')
ap.add_argument('--pollat', type=int, default=9)
ap.add_argument('--chkat', type=int, default=4)
ap.add_argument('--x1at', type=int, default=2)
ap.add_argument('--fpol', default='')
ap.add_argument('--pf', default='18f00,20f01,21f02,23f03')
ap.add_argument('--pl0', default='0')
ap.add_argument('--pl1', default='7')
ap.add_argument('--nearly', type=int, default=10)
ap.add_argument('--xg2', type=int, default=0)
ap.add_argument('--xsp2', type=int, default=4)
ap.add_argument('--xl2', type=int, default=1)
ap.add_argument('--npark', type=int, default=2)
ap.add_argument('--b35', type=int, default=51)
ap.add_argument('--ns35', type=int, default=7)
ap.add_argument('--skew', type=int, default=1)
ap.add_argument('--uearly', type=int, default=1)
ap.add_argument('--w31', type=float, default=30.1)
ap.add_argument('--xw', type=int, default=46)
ap.add_argument('--xw2', type=int, default=26)
ap.add_argument('--spols', default='nnnnn')
ap.add_argument('--g1pre', type=int, default=0)
ap.add_argument('--g1at', type=int, default=0)
ap.add_argument('--rot', type=int, default=0)
ap.add_argument('--rord', default='012345')
ap.add_argument('--xdn', type=int, default=16)
ap.add_argument('--mix2', type=int, default=10)
ap.add_argument('--mix3', type=int, default=7)
ap.add_argument('--prebar', type=int, default=15)
ap.add_argument('--x1in2', type=int, default=1)
ap.add_argument('--simple', type=int, default=1)
ap.add_argument('--warmlate', type=int, default=0)
ap.add_argument('--map', type=int, default=0)
ap.add_argument('--b34', type=int, default=75)
ap.add_argument('--b0g', type=int, default=17)
ap.add_argument('--nj35', type=int, default=7)
ap.add_argument('--y3end', type=float, default=1.4)
ap.add_argument('--stg', default='6,14,18,27,54,57,61')
ap.add_argument('--stp', default='24.1,27.0,31.1,34.97')
ap.add_argument('--upf', default='')
ap.add_argument('--ord', default='c6')
ap.add_argument('--ug', default='')
ap.add_argument('--xug', default='29,32,36,40,44,48,52,55,59')
ap.add_argument('--xg', type=int, default=31)
ap.add_argument('--xsp', type=int, default=4)
ap.add_argument('--probe', type=int, default=-1)
args = ap.parse_args()
XR2 = [int(c) for c in args.xr2]
EXP = set(x for x in args.exp.split(',') if x)
STAMP = args.stamp
WCF = 'nowcf' not in EXP

def f32(x): return '0x%08x' % struct.unpack('<I', struct.pack('<f', float(x)))[0]

P = Fr(9, 16); Q = Fr(2); SIG = P * P + Q * Q; KAP = P * P * Q * Q
XB = 512 * 512 * 192 * 2
WB = 9 * 192 * 192 * 2
UB = 36 * 36864
ROWB = 512 * 384
OOB = 0x7F000000

UNIT = 2080
PLS = 40704
def plane(g): return g * PLS + (g >> 1) * 64
HOFF = 19 * UNIT
DUMMY = plane(3) + HOFF + 1152
assert DUMMY + 256 <= 163840
def rowpos(phi): return (48 - 16 * phi) if phi < 4 else (114 - 16 * (phi - 4))
B0U = {1: 7, 2: 8, 3: 9, 4: 10, 5: 11, 0: 16}
B5U = {2: 12, 3: 13, 4: 14, 5: 15, 0: 17, 1: 18}
Y0U, Y3U = 6, 8
def unit(pos, c):
    if pos == 0: return B0U[c]
    if pos == 5: return B5U[c]
    k = pos - 1
    if c % 2 == 0: return k
    if k < 3: return 4 + k
    return 0 if c == 5 else B5U[5]
def sub(t):
    if t < 24: return 1 + (t & 3), t >> 2
    if t < 30: return 0, (t - 23) % 6
    return 5, t - 30
SLOT = {0: 0, 1: 1, 4: 2, 3: 3, 2: 4, 5: 5}

S3, S4 = 0, 96
RAW = 192
VRING = 228
TMP = 248
vR, vU, vXW = 253, 254, 255
def acc(pos, j, q):
    o = (j * 3 + q) * 4
    if pos == 1: return f'a[{o}:{o+3}]'
    if pos == 2: return f'a[{96+o}:{96+o+3}]'
    if pos in (3, 0): return f'v[{S3+o}:{S3+o+3}]'
    return f'v[{S4+o}:{S4+o+3}]'
def ufrag(t, s, q):
    if t >= 34:
        o = 96 + ((t - 34) * 9 + s * 3 + q) * 4
        return f'a[{o}:{o+3}]'
    i = (t & 1) * 9 + s * 3 + q
    if i < 16: return f'a[{192+4*i}:{192+4*i+3}]'
    return f'v[{240+4*(i-16)}:{240+4*(i-16)+3}]'
def vfrag(F):
    if F >= 340:
        k, f = divmod(F - 340, 10); o = 48 + (k * 4 + f % 4) * 4
        return f'a[{o}:{o+3}]'
    b = VRING + 4 * (F % 3)
    return f'v[{b}:{b+3}]'
sROW = 16
sMASK, sNSIG, sNP2, sIK, sP, sNP, sNSK, sK = 22, 23, 24, 25, 26, 27, 28, 29
sP2, sQT, s2P, sP3h = 30, 31, 34, 35
sW, sGEN, sOUT, sOUT3, sT0, sT1, sT2, sT3 = 38, 39, 40, 41, 42, 43, 44, 45
sEXM = 46
sCB, sTR, sH, sRB, sW96, sWP, sT4 = 48, 49, 50, 51, 52, 53, 54
sPF, sPFD = 100, 101

class Op:
    def __init__(s, text, kind='alu', tag=None, need=(), cls=None):
        s.text, s.kind, s.tag, s.need = text, kind, tag, tuple(need)
        if cls is None:
            m = text.split()[0]
            if m.startswith('v_'): cls = 'v'
            elif m.startswith('s_'): cls = 's'
            elif m.startswith('ds_read'): cls = 'r'
            elif m == 'ds_write_b64': cls = 'w8'
            elif m == 'ds_write_b128': cls = 'w16'
            elif m.startswith('buffer_load_dwordx4'): cls = 'l4'
            elif m.startswith('buffer_load') or m.startswith('global_load'): cls = 'l2'
            elif m.startswith('buffer_store'): cls = 'st'
        s.cls = cls; s.notbefore = None
def A(text, need=()): return Op(text, 'alu', None, need)
def DS(text, tag, need=(), fp=None):
    o = Op(text, 'ds', tag, need); o.fp = fp
    return o
def VM(text, tag, need=()): return Op(text, 'vm', tag, need)
class Grp:
    def __init__(s, ops, cls): s.ops, s.cls, s.notbefore = ops, cls, None
class Wait:
    cls = 's'
    def __init__(s, tags): s.tags = tags; s.notbefore = None
class LgAll:
    cls = 's'; notbefore = None
class BarOnly:
    cls = 'bar'; notbefore = None
class Bar: pass
class Stamp:
    def __init__(s, k): s.k = k

class Emit:
    def __init__(s):
        s.L = []; s.vm = []; s.lg = []; s.late = 0; s.nsince = 0; s.lds = None; s.blk = 0
    def raw(s, x): s.L.append(x)
    def e(s, x): s.L.append('    ' + x)
    def wait(s, tags):
        nv = nl = None
        for tag in tags:
            if tag == 'carry':
                nv = s.nsince if nv is None else min(nv, s.nsince)
                continue
            iv = [i for i, t in enumerate(s.vm) if t == tag]
            if iv:
                n = len(s.vm) - 1 - iv[-1]; nv = n if nv is None else min(nv, n)
            il = [i for i, t in enumerate(s.lg) if t == tag]
            if il:
                n = len(s.lg) - 1 - il[-1]; nl = n if nl is None else min(nl, n)
        parts = []
        if nv is not None:
            nv = min(nv, 63); parts.append(f'vmcnt({nv})'); s.vm = s.vm[max(0, len(s.vm) - nv):] if nv else []
        if nl is not None:
            nl = min(nl, 15); parts.append(f'lgkmcnt({nl})'); s.lg = s.lg[len(s.lg) - nl:] if nl else []
        if parts: s.e('s_waitcnt ' + ' '.join(parts))
        return bool(parts)
    def op(s, o):
        if isinstance(o, (list, tuple)):
            for x in o: s.op(x)
        elif isinstance(o, Grp):
            for x in o.ops: s.op(x)
        elif isinstance(o, Wait): s.wait(o.tags)
        elif isinstance(o, LgAll):
            s.e('s_waitcnt lgkmcnt(0)'); s.lg = []
        elif isinstance(o, BarOnly):
            assert not s.lg, s.lg
            s.e('s_barrier')
            if s.lds: s.lds.barrier()
        elif isinstance(o, Bar):
            s.e('s_waitcnt lgkmcnt(0)'); s.lg = []; s.e('s_barrier')
            if s.lds: s.lds.barrier()
        elif isinstance(o, Stamp):
            if STAMP: s.e(f'{"s_memrealtime" if args.rt else "s_memtime"} s[{60+2*o.k}:{61+2*o.k}]')
        else:
            if o.need and s.wait(o.need): s.late += 1
            if 'nost' in EXP and o.cls == 'st': return
            if 'nowr' in EXP and o.cls == 'w8' and s.lds is None and o.fp[0][1][0] == 'V': return
            if 'nostage' in EXP and o.kind == 'ds' and o.fp[0][1][0] == 'Y': return
            if 'novr' in EXP and o.cls == 'r' and o.tag[0] == 'V' and o.tag[1] > 2: return
            if 'noodd' in EXP and getattr(o, 'odd', False): return
            s.e(o.text)
            if o.kind == 'ds':
                s.lg.append(o.tag)
                if s.lds:
                    for ranges, label, dg in o.fp:
                        s.lds.access('r' if o.cls == 'r' else 'w', ranges, (label, s.blk + dg), f'blk{s.blk}:{len(s.L)}:{o.text}', strict=(s.blk + dg >= 0))
            elif o.kind == 'vm': s.vm.append(o.tag); s.nsince += 1

def pr(r): return f'v[{r}:{r+1}]'
def transform(R, tag):
    ops = [Wait([tag] + (['carry'] if tag == ('x', 1) else []))]
    t1, t2, t3, t4, x = TMP, TMP + 1, TMP + 2, TMP + 3, TMP + 4
    first = True
    for d in range(2):
        D = [R + 2 * r + d for r in range(6)]
        for i, t in enumerate((t1, t2, t3, t4)):
            ops.append(A(f'v_lshlrev_b32 v{t}, 16, v{D[i+1]}', need=[tag] if first else ())); first = False
        for i in range(1, 5): ops.append(A(f'v_and_b32 v{D[i]}, s{sMASK}, v{D[i]}'))
        for (dd, la, lb, ha, hb, k1, k2) in ((D[0], t4, t2, D[4], D[2], sIK, sNSK), (D[5], t1, t3, D[1], D[3], sK, sNSIG)):
            ops.append(A(f'v_lshlrev_b32 v{x}, 16, v{dd}'))
            ops.append(A(f'v_and_b32 v{dd}, s{sMASK}, v{dd}'))
            ops.append(A(f'v_fmac_f32 v{x}, s{k1}, v{la}'))
            ops.append(A(f'v_fmac_f32 v{dd}, s{k1}, v{ha}'))
            ops.append(A(f'v_fmac_f32 v{x}, s{k2}, v{lb}'))
            ops.append(A(f'v_fmac_f32 v{dd}, s{k2}, v{hb}'))
            ops.append(A(f'v_cvt_pk_bf16_f32 v{dd}, v{x}, v{dd}'))
        for (a1, a2, a3, a4, xx) in ((t1, t2, t3, t4, x), (D[1], D[2], D[3], D[4], t2)):
            ops.append(A(f'v_fma_f32 v{xx}, v{a2}, s{sNP2}, v{a4}'))
            ops.append(A(f'v_fmac_f32 v{a4}, -4.0, v{a2}'))
            ops.append(A(f'v_fma_f32 v{a2}, v{a1}, s{sNP2}, v{a3}'))
            ops.append(A(f'v_fmac_f32 v{a3}, -4.0, v{a1}'))
            ops.append(A(f'v_fma_f32 v{a1}, v{a3}, s{sP}, v{a4}'))
            ops.append(A(f'v_fmac_f32 v{a4}, s{sNP}, v{a3}'))
            ops.append(A(f'v_fma_f32 v{a3}, v{a2}, 2.0, v{xx}'))
            ops.append(A(f'v_fmac_f32 v{xx}, -2.0, v{a2}'))
        ops.append(A(f'v_cvt_pk_bf16_f32 v{D[1]}, v{t1}, v{D[1]}'))
        ops.append(A(f'v_cvt_pk_bf16_f32 v{D[4]}, v{t4}, v{D[4]}'))
        ops.append(A(f'v_cvt_pk_bf16_f32 v{D[3]}, v{t3}, v{D[3]}'))
        ops.append(A(f'v_cvt_pk_bf16_f32 v{D[2]}, v{x}, v{t2}'))
    if 'novalu' in EXP: ops = ops[:1] + [A('s_nop 0') for _ in range(9)]
    return ops

def pkfma(d, a, k, c):
    if isinstance(k, str): sr, m = k, 'op_sel_hi:[1,0,1]'
    elif k % 2 == 0: sr, m = f's[{k}:{k+1}]', 'op_sel_hi:[1,0,1]'
    else: sr, m = f's[{k-1}:{k}]', 'op_sel:[0,1,0]'
    return f'v_pk_fma_f32 {pr(d)}, {pr(a)}, {sr}, {pr(c)} {m}'
def transform_pk(R, tag, T):
    ops = [Wait([tag])]
    def fma(d, a, k, c): ops.append(A(pkfma(d, a, k, c)))
    for d in range(2):
        D = [R + 2 * r + d for r in range(6)]
        p = [T + 2 * r for r in range(6)]; x = T + 12
        for r in range(6):
            ops.append(A(f'v_lshlrev_b32 v{p[r]}, 16, v{D[r]}', need=[tag])); ops.append(A(f'v_and_b32 v{p[r]+1}, s{sMASK}, v{D[r]}'))
        fma(p[0], p[4], sIK, p[0]); fma(p[5], p[1], sK, p[5])
        fma(p[0], p[2], sNSK, p[0]); fma(p[5], p[3], sNSIG, p[5])
        fma(x, p[2], sNP2, p[4]); fma(p[4], p[2], '-4.0', p[4]); fma(p[2], p[1], sNP2, p[3]); fma(p[3], p[1], '-4.0', p[3])
        fma(p[1], p[3], sP, p[4]); fma(p[4], p[3], sNP, p[4]); fma(p[3], p[2], '2.0', x); fma(p[2], p[2], '-2.0', x)
        for r in range(6): ops.append(A(f'v_cvt_pk_bf16_f32 v{D[r]}, v{p[r]}, v{p[r]+1}'))
    return ops

def xoff(h, c): return (h + 4 * (c & 1)) * 384 + (c >> 1) * 128 if 'fullline' in EXP else h * 384 + c * 64
def rawset(T): return RAW + 12 * ((T + (T > 30)) % 3)
def xloads(R, c, h, tag):
    ops = [A(f'v_and_b32 v{R+11}, 0x7fff, v{vXW}')]
    assert args.rord[-1] == '5'
    if 'x4emu' in EXP:
        for k in range(3):
            o = VM(f'buffer_load_dwordx4 v[{R+4*k}:{R+4*k+3}], v{R+11}, s[4:7], s{sROW+3*(h&1)+k} offen offset:{((h>>1)*384+c*64) if "fullline" not in EXP else ((h>>1)+2*(c&1))*384+(c>>1)*128}', tag)
            o.cls = 'l2'; ops.append(o)
        return ops
    for r in [int(ch) for ch in args.rord]:
        ops.append(VM(f'buffer_load_dwordx2 v[{R+2*r}:{R+2*r+1}], v{R+11}, s[4:7], s{sROW+r} offen offset:{xoff(h, c)}{args.xpol2 if (c & 1 and r in XR2) else args.xpol}', tag))
    return ops

def vwrites(R, c, h, dg=0, two=False):
    ad = A(f'v_lshrrev_b32 v{TMP+4}, 15, v{vXW}')
    w = {}
    for pos in range(6):
        r = R + 2 * SLOT[pos]
        w[pos] = DS(f'ds_write_b64 v{R + 2 * SLOT[1] if (two and pos != 1) else TMP+4}, v[{r}:{r+1}] offset:{unit(pos,c)*UNIT+(48-16*h)*16}', 'w',
                    fp=[([(unit(pos,c)*UNIT+rowpos(p)*16, unit(pos,c)*UNIT+rowpos(p)*16+256) for p in (h, h+4)], ('V', pos, c), dg)])
    return ad, w

def halo_loads(R, tag):
    a, b, c_ = R + 11, R + 10, R + 9
    ops = [A(f'v_and_b32 v{a}, 0xf0, v{vU}'),
           A(f'v_lshrrev_b32 v{a}, 1, v{a}'),
           A(f'v_add_u32 v{a}, s{sW96}, v{a}'),
           A(f'v_mov_b32 v{b}, s{sT4}'),
           A(f'v_mov_b32 v{c_}, s{sT4+1}'),
           A(f'v_cndmask_b32 v{b}, v{b}, v{c_}, s[56:57]'),
           A(f'v_add_u32 v{a}, v{a}, v{b}')]
    for r in range(6):
        ops += [A(f's_sub_u32 s{sT3}, s{sROW+r}, s{sH}'),
                VM(f'buffer_load_dwordx2 v[{R+2*r}:{R+2*r+1}], v{a}, s[4:7], s{sT3} offen', tag)]
    return ops

def halo_writes(R, dg=0, direct=False):
    a, b, c_ = TMP + 4, TMP, TMP + 1
    ops = [A(f'v_and_b32 v{b}, 0xf0, v{vU}'),
           A(f'v_lshrrev_b32 v{b}, 1, v{b}'),
           A(f'v_add_u32 v{b}, s{sW96}, v{b}'),
           A(f'v_and_b32 v{a}, 8, v{b}'),
           A(f'v_lshrrev_b32 v{c_}, 6, v{b}'),
           A(f'v_mul_u32_u24 v{c_}, 192, v{c_}')] + ([A(f'v_cmp_eq_u32 s[92:93], 0, v{c_}')] if direct else []) + [
           A(f'v_add_u32 v{a}, v{a}, v{c_}'),
           A(f'v_bfe_u32 v{c_}, v{b}, {5 if WCF else 4}, 1'),
           A(f'v_mul_u32_u24 v{c_}, {PLS}, v{c_}'),
           A(f'v_add_u32 v{a}, v{a}, v{c_}'),
           A(f'v_bfe_u32 v{c_}, v{b}, {4 if WCF else 5}, 1'),
           A(f'v_mul_u32_u24 v{c_}, {2*PLS+64}, v{c_}'),
           A(f'v_add_u32 v{a}, v{a}, v{c_}'),
           A(f'v_bfe_u32 v{c_}, v{vU}, 8, 1'),
           A(f'v_lshl_add_u32 v{a}, v{c_}, 4, v{a}'),
           A(f'v_mov_b32 v{c_}, {DUMMY-HOFF}'),
           A(f'v_cndmask_b32 v{a}, v{c_}, v{a}, s[58:59]')]
    for pos in range(6):
        r = R + 2 * SLOT[pos]
        ops.append(DS(f'ds_write_b64 v{a}, v[{r}:{r+1}] offset:{HOFF+32*pos}', 'w',
                      fp=[([(HOFF+c*192+32*pos, HOFF+c*192+32*pos+32) for c in range(6)], 'H', dg)]))
    if direct:
        ops.append(A('s_and_b64 exec, s[92:93], s[58:59]'))
        for pos in range(6):
            r = R + 2 * SLOT[pos]; o = unit(pos, 0) * UNIT + 1024
            ops.append(DS(f'ds_write_b64 v{a}, v[{r}:{r+1}] offset:{o}', 'w', fp=[([(o, o + 32)], ('V', pos, 0), dg)]))
        ops.append(A('s_mov_b64 exec, -1'))
    return ops

def halo_copy(c, R, dg=0):
    lit = sum(unit(pos, c) << (5 * pos) for pos in range(6))
    a, b = R + 4, R + 5
    return [DS(f'ds_read_b128 v[{R}:{R+3}], v{vR} offset:{HOFF+c*192}', 'hc', fp=[([(HOFF+c*192, HOFF+c*192+192)], 'H', dg)]),
            A(f's_mov_b32 s{sT3}, {lit}'),
            A(f'v_bfe_u32 v{a}, v{vU}, 5, 3'),
            A(f'v_mul_u32_u24 v{b}, 5, v{a}'),
            A(f'v_bfe_u32 v{b}, s{sT3}, v{b}, 5'),
            A(f'v_mul_u32_u24 v{b}, 65, v{b}'),
            A(f'v_sub_u32 v{b}, v{b}, v{a}'),
            A(f'v_lshl_add_u32 v{a}, v{b}, 5, v{vR}'),
            Wait(['hc']),
            Grp([A(f's_mov_b64 exec, s[{sEXM}:{sEXM+1}]'),
                 DS(f'ds_write_b128 v{a}, v[{R}:{R+3}] offset:1024', 'w', need=['hc'],
                    fp=[([(unit(pos,c)*UNIT+1024, unit(pos,c)*UNIT+1056)], ('V', pos, c), dg) for pos in range(6)]),
                 A('s_mov_b64 exec, -1')], 'w16')]

def prefetch(reg, g, k, kind='n'):
    sr = sPE if kind == 'e' else sPF
    return [A(f'v_and_b32 v{reg}, 0x1f0, v{vU}'), A(f'v_mul_u32_u24 v{reg}, 96, v{reg}'),
            VM(f'buffer_load_dword v{reg}, v{reg}, s[4:7], s{sr} offen offset:{k*384+g*128}', 'pf')]

sUP = 32
def uprefetch(reg, t0):
    return [A(f's_add_u32 s3, s{sUP}, {t0*36864}'),
            A(f'v_and_b32 v{reg}, 0xf0, v{vU}'), A(f'v_lshlrev_b32 v{reg}, 10, v{reg}'),
            VM(f'buffer_load_dword v{reg}, v{reg}, s[8:11], s3 offen sc1', 'pf')]

def stage_addr(a128, a64, t):
    return [A(f'v_bfe_u32 v{t}, v{vU}, 6, 2'),
            A(f'v_mul_u32_u24 v{a128}, {PLS}, v{t}'),
            A(f'v_and_b32 v{t}, 0x80, v{vU}'),
            A(f'v_lshrrev_b32 v{t}, 1, v{t}'),
            A(f'v_add_u32 v{a128}, v{a128}, v{t}'),
            A(f'v_and_b32 v{t}, 0x40, v{vU}'),
            A(f'v_lshrrev_b32 v{t}, 2, v{t}'),
            A(f'v_add_u32 v{a128}, v{a128}, v{t}'),
            A(f'v_bfe_u32 v{t}, v{vU}, 4, 2'),
            A(f'v_mul_u32_u24 v{t}, 3104, v{t}'),
            A(f'v_add_u32 v{a128}, v{a128}, v{t}'),
            A(f'v_add_u32 v{a128}, s{sW96}, v{a128}'),
            A(f'v_lshrrev_b32 v{t}, 8, v{vU}'),
            A(f'v_lshl_add_u32 v{a64}, v{t}, 3, v{a128}'),
            A(f'v_lshl_add_u32 v{a128}, v{t}, 4, v{a128}')]

def stage_write(a128, a64, u0, j, q4, q2, lab):
    fp = [([(u0*UNIT+g8*3104+j*384, u0*UNIT+g8*3104+j*384+384) for g8 in range(4)], lab[0], lab[1])]
    w = [DS(f'ds_write_b128 v{a128}, {q4} offset:{u0*UNIT+j*384}', 'w', fp=fp),
         DS(f'ds_write_b64 v{a64}, {q2} offset:{u0*UNIT+j*384+64}', 'w', fp=fp)]
    for x in w: x.flo = True
    return w

def cvt_stage(S, a128, a64, u0, lab, js=range(8), nb=None, after0=(), q2last=False):
    ops = []
    for j in js:
        b = S + 12 * j
        w = stage_write(TMP if (after0 and j == 0) else a128, TMP + 1 if (after0 and j == 0) else a64, u0, j, f'v[{b}:{b+3}]', f'v[{b+8}:{b+9}]', lab)
        o = [A(f'v_cvt_pk_bf16_f32 v{b+8+k}, v{b+8+2*k}, v{b+8+2*k+1}') for k in range(2)] + [w[1]]
        o += [A(f'v_cvt_pk_bf16_f32 v{b+k}, v{b+2*k}, v{b+2*k+1}') for k in range(4)] + [w[0]]
        if nb is not None: o[0].notbefore = nb(j)
        if q2last:
            if nb is not None: o[3].notbefore = nb(j) - 6
            o = o[3:] + o[:3]
        ops += o
        if j == 0: ops += list(after0)
    return ops

def rb_read(areg, u0, buf, g8, k, lab):
    o = u0 * UNIT + g8 * 3104 + k * 1024
    return DS(f'ds_read_b128 {buf}, v{areg} offset:{o}', (lab[0], g8, k), fp=[([(o, o + 1024)], lab[0], lab[1])])
SPOL = dict(zip(('Y2', 'Y1', 'Y0', 'Y3', 'T'), [{'s': ' sc1', 'n': ' nt', 'p': '', 'b': ' sc1 nt'}[c] for c in args.spols]))
def rb_store(buf, sbase, rowoff, g8, k, lab):
    return [A(f's_add_u32 s{sT2}, s{sbase}, {rowoff+g8*3072+k*1024}'),
            VM(f'buffer_store_dwordx4 {buf}, v{vU}, s[12:15], s{sT2} offen{SPOL[lab[0]]}', 'st', need=[(lab[0], g8, k)])]

def uload(t, s, q):
    t %= 36
    return VM(f'buffer_load_dwordx4 {ufrag(t,s,q)}, v{vU}, s[8:11], s{sT0} offen offset:{q*1024}{args.upol}', ('U', t, s))
sPE, sPED = 37, 33
sUW = 36
def usoff(t, s):
    if t >= 36: return A(f's_add_u32 s{sT0}, s{sUW}, {(t%36)*36864+s*3072}')
    if 24 <= t < 30: t = 24 + sub(t)[1]
    return A(f's_mov_b32 s{sT0}, {t*36864+s*3072}')

def vread(F):
    dg = F // 360; F %= 360
    t, f = divmod(F, 10)
    pos, c = sub(t)
    e = 65 if f == 0 else (49 if f == 9 else rowpos(f - 1))
    return DS(f'ds_read_b128 {vfrag(F)}, v{vR} offset:{unit(pos,c)*UNIT+e*16}', ('V', F),
              fp=[([(unit(pos,c)*UNIT+e*16, unit(pos,c)*UNIT+e*16+256)], ('V', pos, c), dg)])

def rows_setup(loop=False):
    o = [A(f's_mul_i32 s{sT1}, s{sTR}, {4*ROWB}') if 'xsame' not in EXP else A(f's_mov_b32 s{sT1}, {4*ROWB}'),
         A(f's_add_u32 s{sT1}, s{sT1}, s{sWP}'),
         Grp([A(f's_cmp_ge_u32 s{sTR}, 128'), A(f's_cselect_b32 s{sT1}, {OOB}, s{sT1}')], 'r'),
         A(f's_sub_u32 s{sROW}, s{sT1}, {ROWB}'),
         Grp([A(f's_cmp_eq_u32 s{sTR}, 0'), A(f's_cselect_b32 s{sROW}, {OOB}, s{sROW}')], 'r'),
         A(f's_mov_b32 s{sROW+1}, s{sT1}')]
    for r in range(2, 6): o.append(A(f's_add_u32 s{sROW+r}, s{sT1}, {(r-1)*ROWB}'))
    o.append(A(f's_add_u32 s{sPF}, s{sT1}, s{sPFD}'))
    if loop: o.append(A(f's_add_u32 s{sPE}, s{sT1}, s{sPED}'))
    return o

EARLYT = set()
PL0 = [int(c) for c in args.pl0]; PL1 = [int(c) for c in args.pl1]
OA, OB = RAW + 2, RAW + 28
def early_ab(tiles, nb):
    ops = []
    T1, T2, T3 = RAW + 12, RAW + 16, RAW + 20
    for (j, q) in tiles:
        o = (j * 3 + q) * 4
        l = [A(f'v_accvgpr_read_b32 v{T1+r}, a{o+r}') for r in range(4)] + [A(f'v_accvgpr_read_b32 v{T2+r}, a{96+o+r}') for r in range(4)]
        l[4].notbefore = nb(j, q)
        l += [A(f'v_add_f32 v{T3+r}, v{T1+r}, v{T2+r}') for r in range(4)] + [A(f'v_sub_f32 v{T1+r}, v{T1+r}, v{T2+r}') for r in range(4)]
        l += [A(f'v_accvgpr_write_b32 a{o+r}, v{T3+r}') for r in range(4)] + [A(f'v_accvgpr_write_b32 a{96+o+r}, v{T1+r}') for r in range(4)]
        ops += l; EARLYT.add((j, q))
    return ops
def even_plain(j, T1, T2, O, nb=None):
    ops = []
    for q in range(3):
        o = (j * 3 + q) * 4
        l = [A(f'v_accvgpr_read_b32 v{T1+r}, a{o+r}') for r in range(4)]
        if (j, q) not in EARLYT:
            l += [A(f'v_accvgpr_read_b32 v{T2+r}, a{96+o+r}') for r in range(4)] + [A(f'v_add_f32 v{T1+r}, v{T1+r}, v{T2+r}') for r in range(4)]
        m = [A(f'v_add_f32 v{T2+r}, v{S3+o+r}, v{S4+o+r}') for r in range(4)]
        if nb: m[0].notbefore = nb(j, q)
        m += [A(f'v_sub_f32 v{S4+o+r}, v{S3+o+r}, v{S4+o+r}') for r in range(4)]
        m += [A(f'v_fma_f32 v{S3+o+r}, v{T2+r}, s{sQT}, v{T1+r}') for r in range(4)]
        m[-1].mark = ('y0', j, q)
        m += [A(f'v_fmac_f32 v{T2+r}, s{sP2}, v{T1+r}') for r in range(4)]
        m += [A(f'v_cvt_pk_bf16_f32 v{O+2*q+h}, v{T2+2*h}, v{T2+2*h+1}') for h in (0, 1)]
        ops += l + m
    return ops
def burst(E):
    a128, a64 = TMP, TMP + 1
    for i in range(args.idle2): E.e('s_sleep 37')
    js = [j for j in range(8) if j not in PL0 and j not in PL1]
    if js[0] >= 6: E.e('s_nop 7')
    E.raw('.p2align 3')
    neg = 'neg_lo:[0,1] neg_hi:[0,1]'
    pend = []
    for j in PL0:
        w = stage_write(a128, a64, 0, j, f'v[{OA}:{OA+3}]', f'v[{OA+4}:{OA+5}]', ('Y2', 0))
        E.op(w[0]); pend.append(w[1])
    for n, j in enumerate(js):
        O1 = (OB, OA)[n & 1]
        for q in range(3):
            o = (j * 3 + q) * 4
            T1, T2 = RAW + 12 + (q & 1) * 8, RAW + 12 + (q & 1) * 8 + 4
            for r in range(4): E.e(f'v_accvgpr_read_b32 v{T1+r}, a{o+r}')
            if (j, q) not in EARLYT:
                for r in range(4): E.e(f'v_accvgpr_read_b32 v{T2+r}, a{96+o+r}')
                for h in (0, 2): E.e(f'v_pk_add_f32 {pr(T1+h)}, {pr(T1+h)}, {pr(T2+h)}')
            for h in (0, 2): E.e(f'v_pk_add_f32 {pr(T2+h)}, {pr(S3+o+h)}, {pr(S4+o+h)}')
            for h in (0, 2): E.e(f'v_pk_add_f32 {pr(S4+o+h)}, {pr(S3+o+h)}, {pr(S4+o+h)} {neg}')
            for h in (0, 2): E.e(pkfma(S3 + o + h, T2 + h, sQT, T1 + h))
            for h in (0, 2): E.e(pkfma(T1 + h, T1 + h, sP2, T2 + h))
            for h in (0, 1): E.e(f'v_cvt_pk_bf16_f32 v{O1+2*q+h}, v{T1+2*h}, v{T1+2*h+1}')
            w = stage_write(a128, a64, 0, j, f'v[{O1}:{O1+3}]', f'v[{O1+4}:{O1+5}]', ('Y2', 0))
            if q == 0 and pend: E.op(pend.pop())
            if q == 1: E.op(w[0])
            if q == 2: pend.append(w[1])
    E.op(pend); E.op(Bar())

def odd_part(a128, a64, npark, g_ok, order):
    ops = []
    T1, T2 = RAW + 12, RAW + 16; wr = {}
    for n, j in enumerate(order):
        O1 = RAW + ((n + 1) & 1) * 6
        for q in range(3):
            o = (j * 3 + q) * 4
            if (j, q) in EARLYT:
                for r in range(4): ops.append(A(f'v_accvgpr_read_b32 v{T1+r}, a{96+o+r}'))
            else:
                for r in range(4): ops.append(A(f'v_accvgpr_read_b32 v{T1+r}, a{o+r}'))
                for r in range(4): ops.append(A(f'v_accvgpr_read_b32 v{T2+r}, a{96+o+r}'))
                for r in range(4): ops.append(A(f'v_sub_f32 v{T1+r}, v{T1+r}, v{T2+r}'))
            for r in range(4): ops.append(A(f'v_fma_f32 v{T2+r}, v{T1+r}, s{s2P}, v{S4+o+r} div:2'))
            for r in range(4): ops.append(A(f'v_fma_f32 v{S4+o+r}, v{T1+r}, s{sP3h}, v{S4+o+r} mul:2'))
            for h in (0, 1): ops.append(A(f'v_cvt_pk_bf16_f32 v{O1+2*q+h}, v{T2+2*h}, v{T2+2*h+1}'))
            ops[-2].after = wr.get(n - 2, [])
            ops[-1].mark = ('odd', j, q)
            if n < npark:
                for h in (0, 1): ops.append(A(f'v_accvgpr_write_b32 a{12*j+2*q+h}, v{O1+2*q+h}'))
            else:
                w = stage_write(a128, a64, 0, j, f'v[{O1}:{O1+3}]', f'v[{O1+4}:{O1+5}]', ('Y1', 0))
                for x in w: x.notbefore = g_ok
                if q: ops.append(w[q - 1]); wr.setdefault(n, []).append(w[q - 1])
            if n < npark: ops[-1].mark = ('park', j, q)
    for o in ops:
        if o.cls == 'v': o.odd = True
    return ops

def morder():
    L = []
    if args.ord == 'v':
        for f in range(10):
            L += [(f - s, s, q) for s in range(3) if 0 <= f - s <= 7 for q in range(3)]
    elif args.ord in ('c5', 'c4', 'c6', 'c7', 'c8'):
        for j in range(8):
            if j in (0, 7): L += [(j, s, q if s != 1 else 2 - q) for s in range(3) for q in range(3)]
            elif args.ord == 'c7': L += [(j, 1, 0), (j, 0, 0), (j, 2, 0), (j, 2, 1), (j, 1, 1), (j, 0, 1), (j, 0, 2), (j, 1, 2), (j, 2, 2)]
            elif args.ord == 'c8':
                a_, c_ = (0, 2) if j % 2 == 0 else (2, 0)
                L += [(j, 1, a_), (j, 0, a_), (j, 2, a_), (j, 2, 1), (j, 1, 1), (j, 0, 1), (j, 0, c_), (j, 2, c_), (j, 1, c_)]
            elif args.ord == 'c6': L += [(j, 0, 0), (j, 1, 0), (j, 2, 0), (j, 2, 1), (j, 1, 1), (j, 0, 1), (j, 0, 2), (j, 1, 2), (j, 2, 2)]
            elif args.ord == 'c5': L += [(j, 0, 0), (j, 1, 0), (j, 1, 1), (j, 0, 1), (j, 2, 1), (j, 0, 2), (j, 1, 2), (j, 2, 2), (j, 2, 0)]
            else: L += [(j, 0, 0), (j, 1, 0), (j, 1, 1), (j, 0, 1), (j, 0, 2), (j, 1, 2), (j, 2, 2), (j, 2, 1), (j, 2, 0)]
    else:
        for j in range(8):
            if j == 0 or (j == 7 and args.ord == 'c2'): L += [(j, s, q) for s in range(2) for q in range(3)]
            else: L += [(j, 0, 0), (j, 1, 0), (j, 1, 1), (j, 0, 1), (j, 0, 2), (j, 1, 2)]
            if j: L += [(j - 1, 2, q) for q in range(3)]
        L += [(7, 2, q) for q in range(3)]
    assert len(L) == 72 and len(set(L)) == 72
    return L
MO = morder()
VF = [min(m for m, (j, s, q) in enumerate(MO) if j + s == f) for f in range(10)]
VL = [max(m for m, (j, s, q) in enumerate(MO) if j + s == f) for f in range(10)]
UF = {(s, q): min(m for m, x in enumerate(MO) if x[1:] == (s, q)) for s in range(3) for q in range(3)}
UL = {(s, q): max(m for m, x in enumerate(MO) if x[1:] == (s, q)) for s in range(3) for q in range(3)}
AF = {(j, q): min(m for m, x in enumerate(MO) if (x[0], x[2]) == (j, q)) for j in range(8) for q in range(3)}
AL = {(j, q): max(m for m, x in enumerate(MO) if (x[0], x[2]) == (j, q)) for j in range(8) for q in range(3)}
MX = []
for j in range(8):
    for q in range(3):
        ks = [(k, s_) for k in range(2) for s_ in range(3)]
        MX += [(j, q, k, s_) for (k, s_) in (ks[::-1] if q == 1 else ks)]
if args.skew:
    MX = [x for x in MX[:36] if x[2] == 0] + [x for x in MX[:36] if x[2] == 1] + MX[36:]
XUF = {(k, s_): min(m for m, x in enumerate(MX) if x[2:] == (k, s_)) for k in range(2) for s_ in range(3)}
XAL = {j: max(m for m, x in enumerate(MX) if x[0] == j) for j in range(8)}
XVF = {(k, f): min(m for m, x in enumerate(MX) if (x[2], x[0] + x[3]) == (k, f)) for k in range(2) for f in range(10)}
XVL = {(k, f): max(m for m, x in enumerate(MX) if (x[2], x[0] + x[3]) == (k, f)) for k in range(2) for f in range(10)}
def mfma_list(t):
    pos, c = sub(t)
    L = []
    if t >= 34:
        for (j, q, k, s) in MX[72 * (t - 34):72 * (t - 33)]:
            d = acc(5, j, q); F = 340 + 10 * k + j + s
            L.append(Op(f'v_mfma_f32_16x16x32_bf16 {d}, {ufrag(34+k,s,q)}, {vfrag(F)}, {d}', 'mfma', None, [('U', 34 + k, s), ('V', F)]))
        return L
    for m, (j, s, q) in enumerate(MO):
        d = acc(pos, j, q)
        cc = '0' if (t < 4 and AF[(j, q)] == m) else d
        L.append(Op(f'v_mfma_f32_16x16x32_bf16 {d}, {ufrag(t,s,q)}, {vfrag(10*t+j+s)}, {cc}', 'mfma', None,
                    [('U', t, s), ('V', 10 * t + j + s)]))
    return L

BARS = [0, 3, 7, 11, 15, 16, 19, 23] + ([24] if args.pl1 else []) + [25, 26, 28, 29, 30, 33, 34, 35]
BG = 62 if args.ord in ('v', 'c2', 'c2f') else 64
B35G = args.b35; B34G = args.b34
NJ35 = args.nj35; NS35 = args.ns35
B0G = args.b0g
AY, AY2, AYR = S3 + 4, S3 + 5, S3 + 6
UG = [int(x) for x in (args.ug or {'v': '57,60,65,69,73,77,81,85,88', 'c2': '60,64,67,72,76,80,84,88,92', 'c2f': '65,67,70,73,76,80,84,87,90', 'c5': '66,69,72,76,80,84,88,92,96', 'c4': '66,69,72,76,80,84,88,92,96', 'c6': '66,69,72,76,80,84,88,93,97', 'c7': '66,69,72,76,80,84,88,93,97', 'c8': '66,69,72,76,80,84,88,93,97'}[args.ord]).split(',')]
XG0 = args.xg
CAP = {None: 2, 'l0': 0, 's': 2, 'r': 1, 'l4': 0, 'l2': 0, 'w8': 0, 'w16': 0, 'st': 2, 'bar': 0}
RES = {'l4': ('vm', 3), 'l2': ('vm', args.xsp), 'st': ('vm', 3), 'w8': ('wr', 2), 'w16': ('wr', 4)}
PEN = {'w8': 4, 'w16': 12, 'st': 12, 'bar': 8}
N = 36 * 72
STG = set(int(x) for x in args.stg.split(',') if x)

class Sched:
    def __init__(s):
        s.head = [None] * N; s.body = [[] for _ in range(N)]
        s.busy = {'vm': [False] * N, 'wr': [False] * N}
        s.resv = True; s.xsub = set(); s.nolds = [False] * N; s.marks = {}
    def tight(s, G):
        t, g = divmod(G, 72)
        if args.uearly and ((t == 35 and g >= 48) or (t == 0 and g <= 20)): return False
        if not args.uearly and ((t == 33 and g >= 59) or (t == 34 and g <= 20)): return False
        return t in s.xsub or t == 33
    def cap(s, g): return CAP[s.head[g].cls if s.head[g] is not None else None]
    def fix(s, g, o):
        g %= N
        assert s.head[g] is None, (g // 72, g % 72, o.cls, s.head[g].cls)
        s.head[g] = o
        if o.cls in RES:
            r, k = RES[o.cls]
            for i in range(k): s.busy[r][(g + i) % N] = True
    def try_place(s, ops, g0, g1, rho, phi, relax=0):
        plan = []; g = g0; n = len(ops)
        hd = {}; bd = {}; bz = set(); pos = {}
        def extra(g): return int((g + 1) * phi) - int(g * phi)
        own_body_at = -1
        for k, o in enumerate(ops):
            g = max(g, g0 + int(rho * k * (g1 - g0) / n))
            for x in getattr(o, 'after', ()): g = max(g, pos[id(x)])
            gsave = g
            if o.notbefore is not None: g = max(g, o.notbefore)
            while True:
                if g > g1: return None
                G = g % N
                h = s.head[G] if s.head[G] is not None else hd.get(G)
                nb = len(s.body[G]) + bd.get(G, 0)
                capn = CAP[h.cls if h is not None else None] + extra(g)
                if o.cls != 'v' and h is None and own_body_at < g and nb <= CAP[o.cls] + extra(g):
                    ok = not (s.resv and o.cls != 'st' and (G % 72) in STG and s.tight(G))
                    if o.cls in ('r', 'w8', 'w16', 'st') and s.nolds[G]: ok = False
                    if o.cls == 'st' and STG and s.tight(G):
                        ok = (G % 72) in STG; r, kk = 'vm', 1
                    elif ok and o.cls in RES:
                        r, kk = RES[o.cls]; kk = max(1, kk - relax)
                        ok = not any(s.busy[r][(g + i) % N] or (r, (g + i) % N) in bz for i in range(kk))
                    if ok:
                        hd[G] = o; plan.append((g, 'h', o))
                        if o.cls in RES:
                            for i in range(kk): bz.add((r, (g + i) % N))
                        break
                if o.cls in ('v', 's') and nb < capn:
                    bd[G] = bd.get(G, 0) + 1; plan.append((g, 'b', o)); own_body_at = g
                    break
                g += 1
            if g > getattr(o, 'deadline', g): return None
            pos[id(o)] = g
            if getattr(o, 'flo', False): g = gsave
        return plan
    def place(s, ops, g0, g1, spread=True):
        tries = [(r / 10, 0.0) for r in range(10 if spread else 0, -1, -1)] + [(0.0, p / 20) for p in range(1, 61)]
        tries = [(r, p, x) for x in (0, 1, 2) for (r, p) in tries]
        for rho, phi, relax in tries:
            plan = s.try_place(ops, g0, g1, rho, phi, relax)
            if plan is not None:
                if relax or phi: print(f'  stream {g0//72}:{g0%72}..{g1//72}:{g1%72} relax {relax} overflow {phi}')
                break
        else: raise Exception(f'cannot place stream in {g0//72}:{g0%72}..{g1//72}:{g1%72}')
        return s.commit(plan)
    def commit(s, plan):
        for g, k, o in plan:
            if k == 'h': s.fix(g, o)
            else: s.body[g % N].append(o)
            if hasattr(o, 'mark'): s.marks[o.mark] = g
            o.at = g
        return max(p[0] for p in plan)
    def alap_heads(s, ops, g1, g0):
        g = g1
        for o in ops[::-1]:
            r, k = RES[o.cls]
            while True:
                assert g >= g0, 'alap'
                G = g % N
                if s.head[G] is None and len(s.body[G]) == 0 and not any(s.busy[r][(g + i) % N] for i in range(k)): break
                g -= 1
            s.fix(g, o); o.at = g; g -= 1
    def late_wait(s, w, lo, hi):
        for g in range(hi, lo - 1, -1):
            if s.head[g % N] is None:
                s.fix(g, w); return
            if isinstance(s.head[g % N], Wait):
                s.head[g % N] = Wait(list(s.head[g % N].tags) + list(w.tags)); return
        s.body[hi % N].append(w)
    def cycles(s, t):
        c = 0
        for g in range(72 * t, 72 * t + 72):
            h = s.head[g]
            c += 16 + (PEN.get(h.cls, 0) if h is not None else 0) + 4 * max(0, len(s.body[g]) - s.cap(g))
        return c

def build_body():
    S = Sched()
    vissue = {}
    for t in range(36):
        b = 72 * t
        if t in BARS:
            gb = {0: B0G, 34: B34G, 35: B35G}.get(t, BG)
            S.fix(b + gb - 1, Grp([Stamp(1 + BARS.index(t)), LgAll()], 's')); S.fix(b + gb, BarOnly())
        for f in range(10):
            if 10 * t + f + 3 >= 340: continue
            gend = VL[f]
            if f == 7: gend = max(gend, BG + 1)
            assert gend not in (BG - 1, BG)
            S.fix(b + gend, vread(10 * t + f + 3)); vissue[(10 * t + f + 3) % 360] = b + gend
    def uburst(b, gaps, tu, lo0):
        for i in range(9): S.fix(b + gaps[i], uload(tu, i // 3, i % 3))
        for i in (0, 3, 6):
            lo = gaps[i - 1] if i else lo0
            g = next(g for g in range(max(lo + 1, gaps[i] - 4), gaps[i]) if S.head[(b + g) % N] is None)
            S.fix(b + g, usoff(tu, i // 3))
    for i in range(9): assert UG[i] >= UL[(i // 3, i % 3)]
    XG = [int(x) for x in args.xug.split(',')]
    for t in range(36):
        if t == (35 if args.uearly else 33): continue
        uburst(72 * t, UG, t + 2 + (t >= 33 and args.uearly), XG[8] if t == 33 else UG[8] - 72)
    uburst(72 * 33, XG, 35, UG[8] - 72)
    def vplace(F, g0, g1):
        g = next(g for g in range(g0, g1 + 1) if S.head[g % N] is None)
        S.fix(g, vread(F)); vissue[F % 360] = g; return g
    g = 72 * 33 + 20
    for f in range(4):
        for k in range(2): g = vplace(340 + 10 * k + f, g + 4, 72 * 33 + 66)
    for f in range(4, 10):
        for k in range(2): vplace(340 + 10 * k + f, 72 * 34 + XVL[(k, f - 4)], 72 * 34 + XVF[(k, f)] - 8)
    g = 72 * 35 + B35G
    for F in (360, 361, 362): g = vplace(F, g + 1, 72 * 35 + 68)
    for t in range(34):
        b = 72 * t
        for s_ in range(3):
            m = min(UF[(s_, q)] for q in range(3))
            S.late_wait(Wait([('U', t, s_)] + (['carry'] if t == 1 else [])), b + m - 3, b + m - 1)
        for f in range(10):
            F = 10 * t + f; hi = b + VF[f] - 1
            iss = vissue[F]
            if iss > hi: iss -= N
            S.late_wait(Wait([('V', F)]), min(hi, max(iss + 4, hi - 6)), hi)
    b = 72 * 34
    for k in range(2):
        for s_ in range(3): S.late_wait(Wait([('U', 34 + k, s_)]), b + XUF[(k, s_)] - 3, b + XUF[(k, s_)] - 1)
        for f in range(10):
            hi = b + XVF[(k, f)] - 1
            S.late_wait(Wait([('V', 340 + 10 * k + f)]), max(vissue[340 + 10 * k + f] + 4, hi - 6), hi)
    wins = [(T, T // 4 + 1, T % 4) for T in range(20)] + [(31 + h, 0, h) for h in range(4)]
    if 'noprod' in EXP: wins = []
    S.xsub = set((T - 2) % 36 for (T, c, h) in wins)
    PF = {}
    for spec in args.pf.split(','):
        if spec: PF.setdefault(int(spec[:-3]), []).append(lambda r, spec=spec: prefetch(r, int(spec[-2]), int(spec[-1]), spec[-3]))
    for spec in args.upf.split(','):
        if spec: PF.setdefault(int(spec.split(':')[0]), []).append(lambda r, spec=spec: uprefetch(r, int(spec.split(':')[1])))
    for (T, c, h) in wins:
        R = rawset(T); t = (T - 2) % 36
        ops = xloads(R, c, h, ('x', T))
        for i, f in enumerate(PF.pop(t, [])): ops = f(R + 10 - i) + ops
        late = args.xg2 and (t >= 29 or t <= args.xl2)
        if late: RES['l2'] = ('vm', args.xsp2)
        gx = S.place(ops, 72 * t + (args.xg2 - 1 if late else XG0 - 4), 72 * t + 59, spread=False)
        RES['l2'] = ('vm', args.xsp)
        if T == 19: g19 = gx
    if not wins: g19 = 72 * 17 + 50
    S.place([A(f's_add_u32 s{sTR}, s{sTR}, {(8, 32, 16)[args.map]}'), Grp([A(f's_cmp_eq_u32 s{sGEN}, 1'), A(f's_cselect_b32 s{sTR}, 128, s{sTR}'), A(f's_cselect_b32 s{sUW}, {OOB}, 0')], 'l0')] + rows_setup(True),
            g19 + 1, 72 * 18 + XG0 - 5)
    HR = RAW + 24
    ops = halo_loads(HR, ('x', 20))
    for i, f in enumerate(PF.pop(18, [])): ops = f(HR + 8 - i) + ops
    S.place(ops, 72 * 18 + XG0 - 4, 72 * 18 + 59, spread=False)
    for t, fs in PF.items():
        assert len(fs) == 1 and 19 <= t <= 23
        S.place(fs[0](RAW + (t & 1) if t < 23 else TMP + 4), 72 * t + XG0 - 4, 72 * t + 56, spread=False)
    a128, a64, arb = TMP, TMP + 1, TMP + 2
    aq = lambda r: f'a[{r}:{r+3}]'
    vq = lambda r: f'v[{r}:{r+3}]'
    G = lambda x: int(round(72 * x))
    gk = [(g8, k) for g8 in range(4) for k in range(3)]
    kg = [(g8, k) for k in range(3) for g8 in range(4)]
    SP = [float(x) for x in args.stp.split(',')]
    def stores(chunks, bufs, reads, sbase, rowoff, lab, g0, g1):
        ops = []
        for (g8, k), buf, rd in zip(chunks, bufs, reads):
            st = rb_store(buf, sbase, rowoff, g8, k, lab); st[1].notbefore = rd.at + 6
            ops += [st[0], Wait([(lab[0], g8, k)]), st[1]]; ops[-2].notbefore = rd.at + 5
        S.place(ops, g0, g1); return [o for o in ops if isinstance(o, Op) and o.cls == 'st']
    lab = ('Y2', 0)
    b2 = [vq(RAW + 20 + 4 * n) for n in range(4)] + [vq(RAW + 20), vq(RAW + 24)] + [aq(x) for x in (84, 88, 92, 96, 100, 104)]
    if not PL1: b2[6:] = [aq(96 + 4 * n) for n in range(6)]
    r2 = [rb_read(arb, 0, b2[n], *kg[n], lab) for n in range(12)]
    S.place(r2[:4], G(24), G(24) + 14, spread=False)
    d2 = (SP[1] - SP[0]) / 3
    s2 = stores(kg[:4], b2[:4], r2[:4], sOUT, 2 * ROWB, lab, G(SP[0]), G(SP[0] + d2))
    S.place(r2[4:6], s2[1].at + 2, s2[1].at + 20, spread=False)
    S.place(r2[6:], G(25) + 20, G(25) + 59)
    stores(kg[4:], b2[4:], r2[4:], sOUT, 2 * ROWB, lab, G(SP[0] + d2) + 1, G(SP[1]))
    lab = ('Y1', 0)
    pk = []
    for j in range(args.npark): pk += stage_write(a128, a64, 0, j, f'a[{12*j}:{12*j+3}]', f'a[{12*j+4}:{12*j+5}]', lab)
    S.place(pk, G(25) + BG + 2, G(26) + 30)
    b1 = [aq((108 if PL1 else 120) + 4 * n) for n in range(12)]
    r1 = [rb_read(arb if n < 8 else AYR, 0, b1[n], *kg[n], lab) for n in range(12)]
    S.place(r1[:4], G(26) + BG + 2, G(27) + 30); S.place(r1[4:8], G(28) + BG + 2, G(29) + 20); S.place(r1[8:], G(29) + BG + 2, G(30) + 30)
    stores(kg, b1, r1, sOUT, 1 * ROWB, lab, G(SP[1]) + 1, G(SP[2]))
    lab = ('Y0', 0)
    cs = cvt_stage(S3, AY, AY2, Y0U, lab, nb=lambda j: G(29) + max(AL[(j, q)] for q in range(3)) + 6,
                   after0=[A(f'v_mov_b32 v{AY}, v{a128}'), A(f'v_mov_b32 v{AY2}, v{a64}'), A(f'v_mov_b32 v{AYR}, v{arb}')])
    S.place(cs, G(29) + 20, G(30) + 59, spread=False)
    b0 = [aq(4 * n) for n in range(12)]
    r0 = [rb_read(AYR, Y0U, b0[n], *gk[n], lab) for n in range(12)]
    S.place(r0, G(30) + BG + 2, G(33) + 18)
    stores(gk, b0, r0, sOUT, 0, lab, G(SP[2]) + 1, G(SP[3]))
    nb3 = lambda j: G(34) + XAL[j] + (8 if j > 1 or not args.skew else 11)
    lab = ('Y3', 0)
    S.place(cvt_stage(S4, AY, AY2, Y3U, lab, js=range(3), nb=nb3, q2last=True), G(34) + 10, G(34) + B34G - 2, spread=False)
    S.place(cvt_stage(S4, AY, AY2, Y3U, lab, js=range(3, 6), nb=nb3, q2last=True), G(34) + B34G + 1, G(35) + B35G - 2, spread=False)
    S.place(cvt_stage(S4, AY, AY2, Y3U, lab, js=range(6, NJ35), nb=nb3, q2last=True), G(35) + B35G + 1, G(35) + 71, spread=False)
    b3 = [vq(S4 + 4 * n) for n in range(12)]
    r3 = [rb_read(AYR, Y3U, b3[n], *kg[n], lab) for n in range(8)]
    S.place(r3[:4], G(34) + B34G + 1, G(35) + 30, spread=False)
    S.place(r3[4:], G(35) + B35G + 1, G(35) + 70, spread=False)
    stores(kg[:NS35], b3[:NS35], r3[:NS35], sOUT, 3 * ROWB, lab, G(SP[3]) + 1, G(35) + 71)
    lab = ('Y3', -1)
    ops = []
    for n in range(NS35, 8): ops += rb_store(b3[n], sOUT3, 0, *kg[n], lab)
    g = S.place(ops, 0, 21, spread=False) if ops else 0
    S.place(cvt_stage(S4, AY, AY2, Y3U, lab, js=range(NJ35, 8), nb=lambda j: 7, q2last=True), 0, B0G - 2, spread=False)
    r3 = [rb_read(AYR, Y3U, b3[n], *kg[n], lab) for n in range(8, 12)]
    S.place(r3, B0G + 1, 60)
    stores(kg[8:], b3[8:], r3, sOUT3, 0, lab, max(g + 1, B0G + 6), G(args.y3end))
    S.resv = False
    S.place(stage_addr(a128, a64, TMP + 3) + [A(f'v_add_u32 v{arb}, s{sRB}, v{vU}')], G(21) + 2, G(21) + 20, spread=False)
    et = [(j, q) for j in PL0 + [x for x in range(8) if x not in PL0 + PL1] for q in range(3)][:max(0, args.nearly - 3 * len(PL1))]
    et += [(j, q) for j in PL1 for q in range(3)]
    ops = early_ab(et, lambda j, q: G(21) + AL[(j, q)] + 6)
    for j in PL0: ops += even_plain(j, RAW + 12, RAW + 16, OA, lambda j, q: G(23) + AL[(j, q)] + 6)
    if ops:
        ge = S.place(ops, G(21) + 10, G(23) + 71, spread=False); print(f'  early end {ge/72:.2f}')
    g0 = G(24)
    ops = []; wprev = []
    for n, j in enumerate(PL1):
        O = RAW + 6 * ((len(PL1) - 1 - n) & 1)
        w = stage_write(a128, a64, 0, j, f'v[{O}:{O+3}]', f'v[{O+4}:{O+5}]', ('Y2', 0))
        ep = even_plain(j, RAW + 12, RAW + 16, O)
        for o in ep:
            if hasattr(o, 'mark'): o.deadline = G(24) + AF[o.mark[1:]] - 2
        ops += ep + w[::-1]
    if ops: S.place(ops, g0, G(24) + BG - 3, spread=False); g0 = ep[-1].at
    S.place(odd_part(a128, a64, args.npark, G(25) + BG + 1, list(range(8))), g0, G(29) + 59, spread=False)
    M = S.marks
    print('  odd progress', ' '.join(f'{M[("odd",j,2)]/72:.2f}' for j in range(8)))
    owner = lambda buf: divmod((int(buf[2:buf.index(':')]) - 96) // 4, 3)
    for buf, rd in list(zip(b2, r2)) + list(zip(b1, r1)):
        if buf[0] == 'a' and int(buf[2:buf.index(':')]) >= 96: assert M[('odd',) + owner(buf)] < rd.at, buf
    for j in range(args.npark): assert M[('park', j, 2)] < min(pk[2 * j].at, pk[2 * j + 1].at)
    def group(run, g0):
        for p in range(0, 80):
            phi = p / 40
            snap = (list(S.head), [list(x) for x in S.body], {k: list(v) for k, v in S.busy.items()})
            g = g0; ok = True
            for (T, c, h) in run:
                R = rawset(T)
                ad, w = vwrites(R, c, h, int(T > 30), True)
                if T: g = max(g, 72 * (T - 1) + (args.xw if T < 30 else args.xw2))
                if T == 0: w[1].notbefore = B0G + 1
                if T == 31: w[1].notbefore = G(30) + BG + 1
                if T == 16: w[4].notbefore = G(16) + BG + 1
                dl = 72 * (T + 1) + XG0 - 5
                if h == 3 and T < 30: dl = 72 * T + 59
                if T in (32, 33): dl += 72
                if T == 34: dl = G(35) + B35G - 2
                rest = [w[pos] for pos in (2, 3, 0, 5, 4)] + (halo_copy(c, R, int(T > 30)) if h == 1 else [])
                for ops, keep in ((transform(R, ('x', T)) + [ad, w[1]], True), ([A(f'v_lshrrev_b32 v{R + 2 * SLOT[1]}, 15, v{vXW}')] + rest, False)):
                    plan = S.try_place(ops, g + (not keep), dl, 0.0, phi if keep else 0.0)
                    if plan is None: ok = False; break
                    e_ = S.commit(plan)
                    if keep: g = e_
                if not ok: break
            if ok:
                if phi: print(f'  windows {run[0][0]}.. overflow {phi}')
                return g
            S.head, S.body, S.busy = snap
        raise Exception('group')
    if wins:
        g = 0
        for k in range(5): g = group(wins[4 * k:4 * k + 4], g)
        S.place(transform(HR, ('x', 20)) + halo_writes(HR, 1), max(g, G(19) + 50), G(21) + 1, spread=False)
        g = G(args.w31)
        for k in range(20, 24): g = group(wins[k:k + 1], g)
    if 'map' in EXP:
        sym = {'l4': 'U', 'l2': 'x', 'st': 'S', 'w8': 'w', 'w16': 'W', 'r': 'r', 'bar': 'B', 's': '.', 'l0': ':'}
        for t in range(36):
            print(f'{t:2d} ' + ''.join((sym[S.head[g].cls] if S.head[g] is not None else ' ') for g in range(72 * t, 72 * t + 72)) + '|')
            print('   ' + ''.join(str(len(S.body[g])) if S.body[g] else ' ' for g in range(72 * t, 72 * t + 72)) + '|')
    return S

def emit_body(E, S):
    E.nsince = 0
    for t in range(36):
        if t == 24 and 'noburst' not in EXP: burst(E)
        ml = mfma_list(t)
        if getattr(E, 'labels', False): E.raw(f'sub{t}:')
        for m in range(72):
            E.op(ml[m])
            g = 72 * t + m
            if args.fine >= 0 and m == 0: E.e(('s_memrealtime' if args.rt else 's_memtime') + ' s[98:99]')
            if args.fine >= 0 and m == 40:
                E.e(f's_cmp_eq_u32 s{sGEN}, {args.fine}'); E.e(f's_cselect_b32 s{60+t}, s98, s{60+t}')
            if S.head[g] is not None: E.op(S.head[g])
            for o in S.body[g]: E.op(o)

def srd(E, d, b, n):
    E.e(f's_mov_b32 s{d}, s{b}'); E.e(f's_and_b32 s{d+1}, s{b+1}, 0xffff')
    E.e(f's_mov_b32 s{d+2}, {n}'); E.e(f's_mov_b32 s{d+3}, 0x20000')

NWT = 54
WPART = (1536 if 'fullline' in EXP else 768) if 'x4emu' in EXP else (12288 if 'fullline' in EXP else 1536)
PADS = 'nopads' not in EXP
def PS(E, k):
    if args.pro:
        E.e('s_memtime s[94:95]'); E.e('s_waitcnt lgkmcnt(0)'); E.e('s_sub_u32 s94, s94, s96'); E.e(f'v_writelane_b32 v90, s94, {k}')
def wt_task(E):
    wt_addr(E); wt_loads(E); E.e('s_waitcnt vmcnt(0)'); wt_comp(E)
def wt_addr(E):
    e = E.e
    e('s_mul_i32 s73, s70, 43691'); e('s_lshr_b32 s73, s73, 17')
    e('s_mul_i32 s74, s73, 3'); e('s_sub_u32 s74, s70, s74')
    e('s_mul_i32 s75, s73, 43691'); e('s_lshr_b32 s75, s75, 17')
    e('s_mul_i32 s76, s75, 3'); e('s_sub_u32 s76, s73, s76')
    e('v_and_b32 v101, 14, v2')
    if WCF: e('v_lshrrev_b32 v102, 5, v2'); e('v_lshrrev_b32 v104, 3, v2'); e('v_and_or_b32 v102, v104, 2, v102')
    else: e('v_lshrrev_b32 v102, 4, v2')
    e('v_and_b32 v103, 12, v101'); e('v_and_b32 v105, 1, v2')
    e('s_lshl_b32 s78, s74, 2'); e('s_cmp_lt_u32 s74, 2'); e('s_cselect_b32 s77, 1, 0'); e('s_cselect_b32 s78, s78, 32')
    e('v_mul_u32_u24 v103, s77, v103'); e('v_add_u32 v103, v103, v101'); e('v_add_u32 v103, s78, v103')
    e(f'v_lshl_add_u32 v103, v103, 1, s{sW96}')
    e('v_lshl_add_u32 v102, v102, 1, v105'); e('v_mul_u32_u24 v104, 1536, v102'); e('v_add_u32 v103, v103, v104')
    e('s_mul_i32 s79, s76, 73728'); e('s_mul_i32 s80, s75, 12288'); e('s_add_u32 s79, s79, s80')
    e('s_add_u32 s80, s79, 221184'); e('s_add_u32 s81, s79, 442368')
def wt_loads(E):
    e = E.e
    for r in range(3):
        for k in range(4):
            e(f'buffer_load_dword v{136+r*4+k}, v103, s[60:63], s{79+r} offen offset:{k*384}')
    e('v_mul_u32_u24 v106, 0x0202, v105'); e('v_sub_u32 v106, 0x0504, v106'); e('v_mul_u32_u24 v107, 0x0606, v105'); e('v_add_u32 v107, 0x0100, v107')
    e('v_mov_b32 v108, 0x0c0c'); e('v_lshl_or_b32 v106, v106, 16, v108'); e('v_lshl_or_b32 v107, v107, 16, v108')
    e('s_mul_i32 s82, s76, 3072'); e('s_lshl_b32 s83, s74, 10'); e('s_add_u32 s82, s82, s83')
    e('s_mul_i32 s83, s75, 36864'); e('s_lshl_b32 s84, s83, 2'); e('s_add_u32 s83, s83, s82'); e('s_add_u32 s84, s84, s82')
def wt_comp(E):
    e = E.e
    for i in range(12): e(f'v_mov_b32_dpp v{152+i}, v{136+i} quad_perm:[1,0,3,2] row_mask:0xf bank_mask:0xf')
    for r in range(3):
        for k in range(4):
            e(f'v_perm_b32 v{110+r*8+k}, v{136+r*4+k}, v{152+r*4+k}, v106'); e(f'v_perm_b32 v{110+r*8+4+k}, v{136+r*4+k}, v{152+r*4+k}, v107')
    f1 = 2 * P * P * (P * P - Q * Q); f3 = 2 * Q * Q * (Q * Q - P * P)
    al, be = Fr(1), Q ** 2
    def put(pos, src):
        O = 152 + 4 * pos
        for k in range(4): e(f'v_cvt_pk_bf16_f32 v{O+k}, v{src+2*k}, v{src+2*k+1}')
        if pos == 0: e(f's_add_u32 s85, s83, {24*36864}')
        elif pos == 5: e(f's_add_u32 s85, s83, {30*36864}')
        else: e(f's_add_u32 s85, s84, {(pos-1)*36864}')
        e(f'buffer_store_dwordx4 v[{O}:{O+3}], v{vU}, s[8:11], s85 offen sc1')
    for (pos, g, z) in ((1, al / f1, P), (3, be / f3, Q)):
        for k in range(8):
            e(f'v_mul_f32 v{136+k}, {f32(g)}, v{110+k}'); e(f'v_fmac_f32 v{136+k}, {f32(g*z*z)}, v{126+k}')
            e(f'v_fmamk_f32 v{144+k}, v{118+k}, {f32(g*z)}, v{136+k}'); e(f'v_fmac_f32 v{136+k}, {f32(-g*z)}, v{118+k}')
        put(pos, 144); put(pos + 1, 136)
    put(0, 110); put(5, 126)

KN = 'standalone__winograd__vision_kernel'
def main_kernel(E):
    e = E.e
    E.raw(f""".globl {KN}
.p2align 8
.type {KN},@function
{KN}:""")
    i0 = len(E.L); E.lds = verify.Lds()
    e('s_cmp_ge_u32 s2, 256'); e('s_cbranch_scc1 main_done')
    e('s_load_dwordx2 s[60:61], s[0:1], 8'); e('s_load_dwordx2 s[4:5], s[0:1], 0'); e('s_load_dwordx4 s[12:15], s[0:1], 16'); e('s_load_dwordx2 s[8:9], s[0:1], 32')
    if STAMP: e(f'{"s_memrealtime" if args.rt else "s_memtime"} s[96:97]'); e('s_memrealtime s[98:99]')
    if args.fine >= 0: e(('s_memrealtime' if args.rt else 's_memtime') + ' s[96:97]'); e('s_memrealtime s[98:99]'); e('s_waitcnt lgkmcnt(0)'); e('s_mov_b32 s97, s98')
    if args.span: e('s_memrealtime s[98:99]')
    if 'nocpf' not in EXP:
        e('s_getpc_b64 s[92:93]'); E.raw('pcref:')
        e('v_and_b32 v70, 3, v0'); e('v_lshrrev_b32 v71, 6, v0'); e('v_lshl_add_u32 v70, v70, 7, v71')
        e('s_lshr_b32 s94, s2, 3'); e('s_lshl_b32 s94, s94, 2'); e('v_add_lshl_u32 v70, v70, s94, 7')
        e('v_min_u32 v70, code_end-pcref-4, v70')
        e('v_add_co_u32 v72, vcc, s92, v70'); e('v_mov_b32 v73, s93'); e('s_nop 0'); e('v_addc_co_u32 v73, vcc, 0, v73, vcc')
        E.op(VM('global_load_dword v76, v[72:73], off', 'c'))
    e('v_lshrrev_b32 v1, 6, v0'); e('v_and_b32 v2, 63, v0')
    e(f'v_readfirstlane_b32 s{sW}, v1')
    nwt = 0 if "forcefb" in EXP else NWT
    if args.pro: e('v_mov_b32 v90, 0')
    e(f's_mov_b32 s62, {WB}'); e('s_mov_b32 s63, 0x20000'); e('s_mov_b32 s70, s2'); e(f's_mul_i32 s{sW96}, s{sW}, 96')
    def wl():
        wt_addr(E)
        e('s_waitcnt lgkmcnt(0)'); e('s_and_b32 s61, s61, 0xffff')
        wt_loads(E); PS(E, 1)
    if 'wfirst' not in EXP: e(f's_cmp_lt_u32 s2, {nwt}'); e('s_cbranch_scc1 wl_far')
    else: e(f's_cmp_ge_u32 s2, {nwt}'); e('s_cbranch_scc1 wl_skip'); wl()
    E.raw('wl_skip:')
    e(f'v_lshlrev_b32 v{vU}, 4, v2'); e('v_mov_b32 v98, 0')
    if WCF:
        e('v_bfe_u32 v3, v2, 2, 2'); e('v_lshrrev_b32 v4, 5, v2'); e('v_lshl_add_u32 v3, v4, 2, v3')
        e('v_bfe_u32 v4, v2, 4, 1'); e('v_and_b32 v5, 3, v2'); e('v_lshl_add_u32 v4, v4, 2, v5')
    else: e('v_lshrrev_b32 v3, 3, v2'); e('v_and_b32 v4, 7, v2')
    e('v_mul_u32_u24 v5, 3072, v3'); e(f'v_lshl_add_u32 v{vXW}, v4, 3, v5')
    if 'x4emu' in EXP and 'fullline' in EXP: e(f'v_lshl_add_u32 v{vXW}, v4, 4, v5')
    elif 'x4emu' in EXP: e('v_lshrrev_b32 v5, 2, v2'); e('v_mul_u32_u24 v5, 1536, v5'); e('v_and_b32 v6, 3, v2'); e(f'v_lshl_add_u32 v{vXW}, v6, 4, v5')
    elif 'fullline' in EXP: e('v_lshrrev_b32 v5, 4, v2'); e('v_mul_u32_u24 v5, 3072, v5'); e('v_and_b32 v6, 15, v2'); e(f'v_lshl_add_u32 v{vXW}, v6, 3, v5')
    if args.map == 0:
        e(f's_lshr_b32 s{sT2}, s2, 3'); e(f's_and_b32 s{sCB}, s{sT2}, 3'); e(f's_lshr_b32 s{sT2}, s{sT2}, 2')
        e(f's_and_b32 s{sTR}, s2, 7'); e(f's_lshl_b32 s{sTR}, s{sTR}, 4'); e(f's_add_u32 s{sTR}, s{sTR}, s{sT2}')
    elif args.map == 1:
        e(f's_lshr_b32 s{sT2}, s2, 3'); e(f's_and_b32 s{sCB}, s2, 3'); e(f's_and_b32 s{sTR}, s2, 4'); e(f's_lshl_b32 s{sTR}, s{sTR}, 4'); e(f's_add_u32 s{sTR}, s{sTR}, s{sT2}')
    else:
        e(f's_bfe_u32 s{sT2}, s2, 0x10003'); e(f's_and_b32 s{sCB}, s2, 1'); e(f's_lshl_b32 s{sCB}, s{sCB}, 1'); e(f's_add_u32 s{sCB}, s{sCB}, s{sT2}')
        e(f's_lshr_b32 s{sT2}, s2, 4'); e(f's_and_b32 s{sTR}, s2, 6'); e(f's_lshl_b32 s{sTR}, s{sTR}, 4'); e(f's_add_u32 s{sTR}, s{sTR}, s{sT2}')
    e(f's_and_b32 s90, s{sW}, 1'); e(f's_lshr_b32 s91, s{sW}, 1')
    e(f's_mul_i32 s{sH}, s90, 24576'); e(f's_mul_i32 s{sT3}, s91, {WPART}'); e(f's_add_u32 s{sH}, s{sH}, s{sT3}')
    if args.rot: e(f's_and_b32 s{sT3}, s{sTR}, 1'); e(f's_mul_i32 s{sT3}, s{sT3}, {384*args.rot}'); e(f's_add_u32 s{sH}, s{sH}, s{sT3}')
    e(f's_mul_i32 s{sPFD}, s{sW}, {ROWB}'); e(f's_sub_u32 s{sPFD}, s{sPFD}, s{sH}')
    e(f's_mul_i32 s{sWP}, s{sCB}, 49152'); e(f's_add_u32 s{sWP}, s{sWP}, s{sH}')
    E.op(rows_setup())
    e(f'v_mov_b32 v80, v{vXW}'); e(f's_mov_b32 s6, {XB}'); e('s_mov_b32 s7, 0x20000')
    PR = [8 + 12 * i for i in range(5)]
    poll = lambda: E.op(VM('buffer_load_dword v97, v98, s[64:67], 0 offen offset:128 sc1', 'poll'))
    def xl(h):
        for r in range(6):
            E.op(VM(f'buffer_load_dwordx2 v[{PR[h]+2*r}:{PR[h]+2*r+1}], v80, s[4:7], s{sROW+r} offen offset:{h*384}', ('p', h)))
    def srds():
        e('s_and_b32 s61, s61, 0xffff'); e(f's_mul_i32 s{sT2}, s{sW}, 9216')
        e(f's_add_u32 s8, s8, s{sT2}'); e('s_addc_u32 s9, s9, 0')
        e('s_and_b32 s9, s9, 0xffff'); e(f's_mov_b32 s10, {UB-3*9216}'); e('s_mov_b32 s11, 0x20000')
        srd(E, 64, 14, 256); e('s_mov_b64 s[68:69], s[14:15]')
    e('s_waitcnt lgkmcnt(0)')
    PS(E, 0)
    e('s_and_b32 s5, s5, 0xffff')
    if args.span: e('s_mov_b64 s[68:69], s[14:15]')
    if args.span:
        e(f's_cmp_lg_u32 s{sW}, 0'); e('s_cbranch_scc1 sp_skip')
        e('s_not_b32 s99, s98'); e('s_atomic_umax s98, s[68:69], 64'); e('s_atomic_umax s99, s[68:69], 68')
        E.raw('sp_skip:')
    e(f's_cmp_lt_u32 s2, {nwt}'); e('s_cbranch_scc1 wt_path')
    E.vm = []
    if args.xdelay:
        e(f's_lshr_b32 s73, s2, 3'); e(f's_cmp_ge_u32 s73, {args.xdn}'); e('s_cbranch_scc1 nodelay'); e(f's_sleep {args.xdelay}'); E.raw('nodelay:')
    def helper():
        e('s_lshr_b32 s73, s2, 3'); e('s_sub_u32 s73, s73, 7'); e('s_lshl_b32 s74, s73, 2'); e(f's_add_u32 s74, s74, s{sW}')
        e('s_and_b32 s75, s2, 7'); e('s_lshl_b32 s75, s75, 9'); e('s_add_u32 s74, s74, s75'); e('s_mul_i32 s74, s74, 24576')
        e('s_cmp_lt_u32 s73, 18'); e(f's_cselect_b32 s74, s74, {OOB}'); e(f'v_mul_u32_u24 v81, 24, v{vU}')
        e('buffer_load_dword v81, v81, s[4:7], s74 offen')
    if args.help_at == 0: helper()
    xl(0)
    if args.help_at == 1: helper()
    xl(1)
    if args.help_at == 2: helper()
    srds()
    e('s_branch wt_join')
    if 'wfirst' not in EXP: E.raw('wl_far:'); wl(); e('s_branch wl_skip')
    E.raw('wt_path:')
    vm0 = list(E.vm)
    srds()
    e('s_waitcnt vmcnt(0)'); PS(E, 2)
    wt_comp(E); PS(E, 3)
    if 'publate' in EXP: xl(0)
    E.raw('wt_join:')
    E.vm = list(vm0)
    PS(E, 5)
    e('s_and_b32 s13, s13, 0xffff'); e(f's_mov_b32 s14, {XB}'); e('s_mov_b32 s15, 0x20000')
    e('v_lshrrev_b32 v5, 4, v2'); e(f'v_mul_u32_u24 v6, {PLS}, v5'); e('v_lshrrev_b32 v5, 1, v5')
    e('v_lshl_add_u32 v6, v5, 6, v6'); e(f'v_and_b32 v5, 0xf0, v{vU}'); e(f'v_add_u32 v{vR}, v6, v5')
    if WCF: e('v_lshrrev_b32 v6, 2, v4'); e('v_and_or_b32 v6, v4, 2, v6')
    else: e('v_lshrrev_b32 v6, 1, v4')
    e(f'v_mul_u32_u24 v7, {PLS}, v6'); e('v_lshrrev_b32 v6, 1, v6'); e('v_lshl_add_u32 v7, v6, 6, v7')
    e('v_and_b32 v6, 1, v2'); e('v_lshl_add_u32 v7, v6, 3, v7'); e('v_lshl_add_u32 v7, v3, 4, v7')
    e(f's_lshl_b32 s{sT2}, s90, 7'); e(f's_mul_i32 s{sT3}, s91, 1056'); e(f's_add_u32 s{sT2}, s{sT2}, s{sT3}')
    if 'wlin' in EXP: e('v_lshlrev_b32 v7, 3, v2'); e(f's_mul_i32 s{sT2}, s{sW}, {PLS}')
    if 'w4way' in EXP: e('v_lshrrev_b32 v6, 2, v4'); e('v_lshlrev_b32 v6, 6, v6'); e('v_sub_u32 v7, v7, v6')
    e(f'v_add_u32 v7, s{sT2}, v7'); e(f'v_lshl_or_b32 v{vXW}, v7, 15, v{vXW}')
    e(f's_mul_i32 s{sRB}, s{sW}, {PLS}'); e(f's_lshl_b32 s{sT3}, s91, 6'); e(f's_add_u32 s{sRB}, s{sRB}, s{sT3}')
    e(f's_lshl_b32 s{sT3}, s90, 4'); e(f's_add_u32 s{sRB}, s{sRB}, s{sT3}')
    e(f's_mul_i32 s{sOUT}, s{sTR}, {4*ROWB}'); e(f's_mul_i32 s{sT3}, s{sCB}, 49152'); e(f's_add_u32 s{sOUT}, s{sOUT}, s{sT3}')
    e(f's_mul_i32 s{sT3}, s{sW}, 12288'); e(f's_add_u32 s{sOUT}, s{sOUT}, s{sT3}')
    e(f's_mov_b32 s{sOUT3}, {OOB}'); e(f's_mov_b32 s{sGEN}, 0'); e(f's_mov_b32 s{sUW}, 0')
    e(f's_lshl_b32 s{sT3}, s{sW}, 4'); e(f's_mov_b32 s{sEXM}, 0xfff'); e(f's_mov_b32 s{sEXM+1}, 0'); e(f's_lshl_b64 s[{sEXM}:{sEXM+1}], s[{sEXM}:{sEXM+1}], s{sT3}')
    e('s_mov_b32 s58, 0x0fff0fff'); e('s_mov_b32 s59, 0')
    for r, v in ((sNSIG, -SIG), (sNP2, -P * P), (sIK, 1 / KAP), (sP, P), (sNP, -P), (sNSK, -SIG / KAP), (sK, KAP),
                 (sP2, P * P), (sQT, 1 / (Q * Q)), (s2P, 2 * P), (sP3h, P ** 3 / 2)):
        e(f's_mov_b32 s{r}, {f32(v)}')
    e(f's_mov_b32 s{sMASK}, 0xffff0000')
    if args.upf: e(f's_lshr_b32 s{sUP}, s2, 3'); e(f's_lshl_b32 s{sUP}, s{sUP}, 9'); e(f's_mul_i32 s3, s{sW}, {9216-128}'); e(f's_sub_u32 s{sUP}, s{sUP}, s3'); e(f'v_mov_b32 v{RAW+10}, 0'); e(f'v_mov_b32 v{RAW+22}, 0'); e(f'v_mov_b32 v{RAW+34}, 0')
    e(f's_and_b32 s{sT3}, s{sTR}, 7'); e(f's_cmp_eq_u32 s{sT3}, 0'); e(f's_cselect_b32 s{sPED}, {-ROWB & 0xffffffff}, 0x40000000')
    e(f's_cmp_eq_u32 s{sT3}, 7'); e(f's_cselect_b32 s{sPED}, {4*ROWB}, s{sPED}')
    e(f's_mul_i32 s{sT3}, s{sW}, {ROWB-384}'); e(f's_sub_u32 s{sT3}, s{sPFD}, s{sT3}'); e(f's_add_u32 s{sPED}, s{sPED}, s{sT3}'); e(f's_mov_b32 s{sPE}, {OOB}')
    E.op(stage_addr(AY, AY2, AYR)); e(f'v_add_u32 v{AYR}, s{sRB}, v{vU}')
    if PADS:
        for r in [RAW, RAW + 1, RAW + 11, RAW + 23, RAW + 32, RAW + 35, TMP + 4]: e(f'v_mov_b32 v{r}, 0')
        e(f's_mov_b32 s{sT0}, 0')
    e(f's_cmp_gt_u32 s{sCB}, 0'); e(f's_cselect_b32 s{sT3}, 384, 0'); e(f's_cselect_b32 s{sT4+1}, 0, {OOB}')
    e(f's_add_u32 s{sH}, s{sH}, s{sT3}'); e(f's_add_u32 s{sT4}, s{sT3}, 49152')
    e(f's_cmp_eq_u32 s{sCB}, 3'); e(f's_cselect_b32 s{sT4}, {OOB}, s{sT4}')
    e('s_mov_b32 s56, 0xffff0000'); e('s_mov_b32 s57, 0')
    e(f's_cmp_ge_u32 s2, {nwt}'); e('s_cbranch_scc1 pub_skip')
    if PADS: e('s_branch do_warm'); E.raw('wt_ret:')
    e('s_mov_b32 s87, 1'); e(f's_cmp_lg_u32 s{sW}, 0')
    e(f's_waitcnt vmcnt({6 if "ack6" in EXP else 0})'); e('s_barrier'); e('s_cbranch_scc1 wt_pub')
    e('s_atomic_add s87, s[68:69], 0 glc'); e('s_waitcnt lgkmcnt(0)'); PS(E, 4)
    e(f's_cmp_lg_u32 s87, {NWT-1}'); e('s_cbranch_scc1 wt_pub')
    e('s_atomic_add s87, s[68:69], 128')
    E.raw('wt_pub:')
    if 'publate' not in EXP: xl(0)
    xl(1); E.vm = list(vm0)
    E.raw('pub_skip:')
    PS(E, 6)
    if 'halolast' not in EXP: E.op(halo_loads(PR[4], 'ph'))
    for h in range(2, 4): xl(h)
    if 'halolast' in EXP: E.op(halo_loads(PR[4], 'ph'))
    PS(E, 7)
    def mix(main, side, every):
        side = list(side)
        for i, o in enumerate(main):
            E.op(o)
            if side and i % every == every - 1: E.op(side.pop(0))
        E.op(side)
    def task(h):
        ad, w = vwrites(PR[h], 0, h)
        return transform_pk(PR[h], ('p', h), 176) + [ad] + [w[pos] for pos in range(6)]
    def ul(t): return [([usoff(t, i // 3)] if i % 3 == 0 else []) + [uload(t, i // 3, i % 3)] for i in range(9)]
    def xw(T):
        o = xloads(RAW + 12 * T, 1, T, ('x', T)); return [o[:2]] + o[2:]
    def warm():
        if not PADS: return
        e(f's_cmp_lt_u32 s2, {nwt}'); e('s_cbranch_scc1 warm_done')
        E.raw('do_warm:')
        e('s_mov_b64 vcc, -1')
        for k in range(3): e(f's_cmp_eq_u32 s{sW}, {k}'); e(f's_cbranch_scc1 pad{k}')
        e('s_branch pad3')
        E.raw('warm_ret:'); e('s_mov_b64 vcc, 0')
        e(f's_cmp_lt_u32 s2, {nwt}'); e('s_cbranch_scc1 wt_ret')
        E.raw('warm_done:')
    assert args.uearly
    E.op(task(0)); PS(E, 8); E.op(task(1)); PS(E, 9)
    E.op(transform_pk(PR[4], 'ph', 176)); E.op(halo_writes(PR[4], 0, True))
    if args.simple:
        assert args.x1in2
        t2 = task(2)
        if args.simple == 1: E.op(xw(0) + xw(1)); E.op(t2); PS(E, 10); E.op(task(3)); poll()
        else: mix(t2, xw(0), args.mix2); PS(E, 10); t3 = task(3); E.op(t3[0]); poll(); mix(t3[1:], xw(1), args.mix2)
        PS(E, 11); warm(); e('s_mov_b32 s86, 0')
    else:
        if not args.warmlate: warm()
        t2 = task(2)
        E.op(t2[0]); poll(); mix(t2[1:], xw(0) + (xw(1) if args.x1in2 else []), args.mix2); PS(E, 10)
        e('s_mov_b32 s86, 0')
        E.op(Wait(['poll'])); e('v_readfirstlane_b32 s87, v97'); PS(E, 12); e('s_nop 0'); e('s_cmp_eq_u32 s87, 0'); e('s_cbranch_scc1 not_yet')
        vm1 = list(E.vm); lg1 = list(E.lg); lds_ = E.lds; E.lds = None
        mix(task(3), ul(0), args.mix3); PS(E, 11)
        e('s_branch u_done')
        E.raw('not_yet:')
        E.vm = vm1; E.lg = lg1; E.lds = lds_
        poll(); E.op(task(3)); PS(E, 11)
    E.op(Wait(['poll']))
    PS(E, 13)
    E.raw('poll_loop:')
    e('v_readfirstlane_b32 s87, v97'); e('s_add_u32 s86, s86, 1')
    e('s_cmp_lg_u32 s87, 0'); e('s_cbranch_scc1 u_ready')
    e('buffer_load_dword v97, v98, s[64:67], 0 offen offset:128 sc1')
    e('s_cmp_lt_u32 s86, 512'); e('s_waitcnt vmcnt(0)'); e('s_cbranch_scc1 poll_loop')
    e('s_mov_b32 s70, 0'); e('s_branch wt_loop')
    E.raw('u_ready:')
    PS(E, 14)
    E.op(ul(0))
    E.raw('u_done:')
    if args.pro: e('v_writelane_b32 v90, s86, 17')
    rest = ([] if args.x1in2 else xw(1)) + ul(1)
    E.op(rest[:args.prebar])
    if args.warmlate and not args.simple: warm()
    E.op(Bar())
    for F in range(3): E.op(vread(F))
    E.op(rest[args.prebar:])
    E.op(Stamp(0))
    for i in range(args.idle): e('s_sleep 37')
    PS(E, 15)
    pro_vm = list(E.vm); iw = len(E.L); e('s_waitcnt vmcnt(0) lgkmcnt(0)')
    if args.pro:
        PS(E, 16)
        e('s_mov_b32 s10, 0x400000'); e('s_lshl_b32 s94, s2, 10'); e('s_add_u32 s94, s94, 0x300000'); e(f's_mul_i32 s95, s{sW}, {9216-256}'); e('s_sub_u32 s94, s94, s95')
        e(f'v_lshrrev_b32 v91, 2, v{vU}'); e('buffer_store_dword v90, v91, s[8:11], s94 offen'); e('s_waitcnt vmcnt(0)'); e(f's_mov_b32 s10, {UB-3*9216}')
    S = build_body()
    E2 = Emit(); emit_body(E2, S)
    E.vm = list(E2.vm); E.lg = list(E2.lg); st = (list(E.vm), list(E.lg)); E.late = 0
    k = 9 if args.x1in2 else 15; assert all(t[:2] in (('U', 1), ('x', 1)) for t in pro_vm[-k:])
    E.L[iw] = f'    s_waitcnt vmcnt({k}) lgkmcnt(0)'
    print('entry vmcnt', k)
    lds = E.lds; E.lds = None
    if PADS: e('s_branch blk_loop'); E.raw('.p2align 12')
    else: E.raw('.p2align 6')
    E.raw('blk_loop:'); i1 = len(E.L)
    E.labels = True
    emit_body(E, S)
    print('late (unplanned) waits in body:', E.late)
    assert (E.vm, E.lg) == st, (E.vm, st)
    e(f's_add_u32 s{sOUT3}, s{sOUT}, {3*ROWB}'); e(f's_add_u32 s{sOUT}, s{sOUT}, {4*(8, 32, 16)[args.map]*ROWB}')
    e(f's_add_u32 s{sGEN}, s{sGEN}, 1'); e(f's_cmp_lt_u32 s{sGEN}, 2'); e('s_cbranch_scc1 blk_loop')
    def tail(E):
        SPOL['Y3'] = SPOL['T']
        lab = ('Y3', -1)
        kg = [(g8, k) for k in range(3) for g8 in range(4)]
        buf = lambda n: f'v[{S3+16+4*(n-4)}:{S3+16+4*(n-4)+3}]'
        for n in range(NS35, 8): E.op(rb_store(f'v[{S4+4*n}:{S4+4*n+3}]', sOUT3, 0, *kg[n], lab))
        if NS35 == 8: E.e('s_nop 3')
        E.op(cvt_stage(S4, AY, AY2, Y3U, lab, js=range(NJ35, 8), q2last=True))
        E.op(Bar()); lo = 8
        for n in range(lo, 12): E.op(rb_read(AYR, Y3U, buf(n), *kg[n], lab))
        for n in range(lo, 12): E.op(rb_store(buf(n), sOUT3, 0, *kg[n], lab))
    i2 = len(E.L)
    V = Emit(); V.lds = lds; V.vm = list(E.vm); V.lg = list(E.lg)
    V.blk = 0; emit_body(V, S); V.blk = 1; emit_body(V, S); V.blk = 2; tail(V)
    tail(E)
    errs = verify.check(E.L[i0:i2] + E.L[i1:]) + lds.errs
    for x in errs[:30]: print('VERIFY:', x)
    print('verify errors:', len(errs))
    if STAMP:
        e('s_waitcnt vmcnt(0)')
        e(f'{"s_memrealtime" if args.rt else "s_memtime"} s[92:93]'); e('s_memrealtime s[94:95]')
        e('s_load_dwordx2 s[16:17], s[0:1], 24'); e('s_waitcnt lgkmcnt(0)')
        e(f's_cmp_lg_u32 s2, {args.fwg}'); e('s_cbranch_scc1 main_done'); e(f's_cmp_lg_u32 s{sW}, 0'); e('s_cbranch_scc1 main_done')
        srd(E, 4, 16, 256)
        e('v_mov_b32 v1, 0')
        n = len(BARS) + 1
        def put(k):
            e(f'v_mov_b32 v2, s{sT0}'); e(f'buffer_store_dword v2, v1, s[4:7], 0 offen offset:{4*k}')
            if k == args.probe: e(f's_mov_b32 s{sT1}, s{sT0}')
        e(f's_sub_u32 s{sT0}, s92, s96'); put(0)
        e(f's_sub_u32 s{sT0}, s94, s98'); put(1)
        e(f's_sub_u32 s{sT0}, s60, s96'); put(2)
        e(f's_sub_u32 s{sT0}, s62, s60'); put(3)
        for k in range(2, n):
            e(f's_sub_u32 s{sT0}, s{60+2*k}, s{60+2*(k-1)}'); put(2 + k)
        e(f's_sub_u32 s{sT0}, s92, s{60+2*(n-1)}'); put(2 + n)
        if args.probe >= 0:
            e(f's_min_u32 s{sT1}, s{sT1}, 400000')
            if args.rt: e(f's_min_u32 s{sT1}, s{sT1}, 20000'); e(f's_lshl_b32 s{sT1}, s{sT1}, 3')
            else: e(f's_lshr_b32 s{sT1}, s{sT1}, 2'); e(f's_mul_i32 s{sT1}, s{sT1}, 1638'); e(f's_lshr_b32 s{sT1}, s{sT1}, 10')
            E.raw('spin:'); e('s_memrealtime s[90:91]'); e('s_waitcnt lgkmcnt(0)'); e('s_sub_u32 s90, s90, s94'); e(f's_cmp_lt_u32 s90, s{sT1}'); e('s_cbranch_scc1 spin')
    if args.fine >= 0:
        e('s_waitcnt vmcnt(0)'); e(('s_memrealtime' if args.rt else 's_memtime') + ' s[98:99]'); e('s_memrealtime s[56:57]')
        e('s_load_dwordx2 s[16:17], s[0:1], 32'); e('s_waitcnt lgkmcnt(0)')
        e(f's_cmp_lg_u32 s{sW}, 0'); e('s_cbranch_scc1 main_done')
        srd(E, 4, 16, 0x400000)
        e('s_lshl_b32 s16, s2, 8'); e('s_add_u32 s16, s16, 0x200000'); e('v_mov_b32 v1, 0')
        for k in range(41):
            if k == 0: e(f's_sub_u32 s{sT0}, s60, s96')
            elif k < 36: e(f's_sub_u32 s{sT0}, s{60+k}, s{59+k}')
            elif k == 36: e(f's_sub_u32 s{sT0}, s98, s95')
            elif k == 37: e(f's_sub_u32 s{sT0}, s98, s96')
            elif k == 38: e(f's_mov_b32 s{sT0}, s97')
            elif k == 39: e(f's_mov_b32 s{sT0}, s56')
            elif k == 40: e(f's_getreg_b32 s{sT0}, hwreg(HW_REG_XCC_ID)')
            e(f'v_mov_b32 v2, s{sT0}'); e(f'buffer_store_dword v2, v1, s[4:7], s16 offen offset:{4*k}')
    if args.span:
        e('s_waitcnt vmcnt(0)'); e('s_memrealtime s[94:95]'); e('s_waitcnt lgkmcnt(0)')
        e('s_mov_b32 s96, s94'); e('s_atomic_umax s96, s[68:69], 72'); e('s_waitcnt lgkmcnt(0)')
        e('s_cmp_lg_u32 s2, 100'); e('s_cbranch_scc1 main_done'); e(f's_cmp_lg_u32 s{sW}, 0'); e('s_cbranch_scc1 main_done')
        E.raw('spin1:'); e('s_memrealtime s[90:91]'); e('s_waitcnt lgkmcnt(0)'); e('s_sub_u32 s90, s90, s94'); e('s_cmp_lt_u32 s90, 1500'); e('s_cbranch_scc1 spin1')
        e('s_load_dwordx4 s[84:87], s[68:69], 64 glc'); e('s_waitcnt lgkmcnt(0)'); e('s_not_b32 s85, s85')
        if args.span == 1: e('s_sub_u32 s84, s84, s85')
        elif args.span == 2: e('s_sub_u32 s84, s86, s85')
        else: e('s_mov_b32 s84, 0')
        e('s_min_u32 s84, s84, 20000'); e('s_lshl_b32 s84, s84, 3'); e('s_add_u32 s84, s84, 12000')
        E.raw('spin2:'); e('s_memrealtime s[90:91]'); e('s_waitcnt lgkmcnt(0)'); e('s_sub_u32 s90, s90, s85'); e('s_cmp_lt_u32 s90, s84'); e('s_cbranch_scc1 spin2')
    E.raw('main_done:'); e('s_endpgm')
    E.raw('code_end:')
    E.raw('wt_loop:')
    wt_task(E)
    e('s_add_u32 s70, s70, 1'); e(f's_cmp_lt_u32 s70, {NWT}'); e('s_cbranch_scc1 wt_loop')
    e('s_waitcnt vmcnt(0)'); e('s_branch u_ready')
    return S

def kd(name, vg, acc_off, sg):
    return f""".amdhsa_kernel {name}
  .amdhsa_next_free_vgpr {vg}
  .amdhsa_next_free_sgpr {sg}
  .amdhsa_accum_offset {acc_off}
  .amdhsa_group_segment_fixed_size 0
  .amdhsa_kernarg_size 40
  .amdhsa_user_sgpr_count 2
  .amdhsa_user_sgpr_kernarg_segment_ptr 1
  .amdhsa_system_sgpr_workgroup_id_x 1
  .amdhsa_ieee_mode 0
.end_amdhsa_kernel"""

def add_pads(E):
    import subprocess, re, tempfile
    i1 = E.L.index('blk_loop:'); i2 = E.L.index('main_done:')
    tmp = tempfile.mkdtemp()
    txt = '\n'.join(l for l in E.L if l != '.p2align 3') + '\n.text\n' + ''.join(f'pad{k}:\n' for k in range(4))
    open(tmp + '/a.s', 'w').write(txt)
    subprocess.run(['clang', '-x', 'assembler', '-target', 'amdgcn-amd-amdhsa', '-mcpu=gfx950', '-c', tmp + '/a.s', '-o', tmp + '/a.o'], check=True)
    dis = subprocess.run(['llvm-objdump', '-d', '--mcpu=gfx950', tmp + '/a.o'], capture_output=True, text=True).stdout
    dis = dis[dis.index('<blk_loop>:' if '<blk_loop>:' in dis else '<sub0>:'):]
    sizes = [4 * len(m.group(1).split()) for m in re.finditer(r'// [0-9A-F]{12}: ((?:[0-9A-F]{8} ?)+)', dis)]
    out = []; addr = 0; n = 0; pads = []; want = 0; inburst = False
    for l in E.L[i1 + 1:i2]:
        if l == '.p2align 3':
            if addr % 8: out.append('    s_nop 0'); addr += 4
            inburst = True
            continue
        out.append(l)
        if not l.startswith('    '): continue
        addr += sizes[n]; n += 1
        mf = l.strip().startswith('v_mfma')
        if mf: inburst = False
        if addr >= want and (mf or inburst):
            pads.append(len(out)); out.append(None); addr += 4
            if inburst: out.append('    s_nop 0'); addr += 4
            want += 4096
    for k, i in enumerate(pads):
        out[i] = f'pad{k}:\n    s_cbranch_vccnz ' + (f'pad{k+4}' if k + 4 < len(pads) else 'warm_ret')
    E.L[i1 + 1:i2] = out
    print('pads', len(pads), 'loop+tail bytes', addr)

def main():
    E = Emit()
    E.raw("""; 3x3 conv via 1D Winograd F(4,3) along H + direct taps along W (generated by gen/gen11.py)
; @launch grid=(256,1,1) block=(256,1,1) lds=163840
.amdgcn_target "amdgcn-amd-amdhsa--gfx950"
.text""")
    load = main_kernel(E)
    E.raw('.section .rodata,"a"\n.p2align 6')
    E.raw(kd(KN, 512, 256, 102))
    if PADS: add_pads(E)
    open(args.out, 'w').write('\n'.join(E.L) + '\n')
    print(' '.join(f'{t}:{load.cycles(t)}' for t in range(36)), ' total', sum(load.cycles(t) for t in range(36)))
main()
```
